```python
import torch

def _softmax(x, axis=-1):
    return torch.softmax(x, dim=axis)
def _gelu(x):
    return torch.nn.functional.gelu(x, approximate="tanh")
def _silu(x):
    return torch.nn.functional.silu(x)
def _sigmoid(x):
    return torch.sigmoid(x)
def _layernorm(x, axis=-1, eps=1e-5):
    m = x.mean(dim=axis, keepdim=True)
    v = x.var(dim=axis, keepdim=True, unbiased=False)
    return (x - m) / torch.sqrt(v + eps)
def _scatter_add(tgt, idx, src, axis=0):
    return tgt.clone().index_add_(axis, idx, src)
def _segment_sum(src, seg, n):
    out = torch.zeros((n,) + src.shape[1:], dtype=src.dtype)
    return out.index_add_(0, seg, src)
def _pad(x, pw):
    flat = tuple(v for pair in reversed(pw) for v in pair)
    return torch.nn.functional.pad(x, flat)

kernel_name = 'gated_mix__mha_block_cached__glu_gated_bilinear__decode'

def setup_inputs():

    _w = (lambda a: (lambda t: t.to(torch.bfloat16) if t.is_floating_point() else t)(torch.as_tensor(a)))
    def _A_setup():
        B, Sq, D = 4, 1, 640
        H, Sk, Dh = 32, 4096, 128
        return {
            "x": _w((lambda *s: torch.randn(*s, dtype=torch.bfloat16) * 0.05)(B, Sq, D)),
            "k_cache": _w((lambda *s: torch.randn(*s, dtype=torch.bfloat16) * 6.4)(B, H, Sk, Dh)),
            "v_cache": _w((lambda *s: torch.randn(*s, dtype=torch.bfloat16) * 0.05)(B, H, Sk, Dh)),
            "wq": _w((lambda *s: torch.randn(*s, dtype=torch.bfloat16) * 6.4)(D, H * Dh) * (D ** -0.5)),
            "wo": _w((lambda *s: torch.randn(*s, dtype=torch.bfloat16) * 0.05)(H * Dh, D) * ((H * Dh) ** -0.5)),
        }
    _A_in = _A_setup()

    def _B_setup():
        B, S, D, F = 4, 1, 640, 1728
        return {
            "x": _w((lambda *s: torch.randn(*s, dtype=torch.bfloat16) * 0.05)(B, S, D)),
            "w_gate": _w((lambda *s: torch.randn(*s, dtype=torch.bfloat16) * 0.4)(D, F) * (D ** -0.5)),
            "w_up": _w((lambda *s: torch.randn(*s, dtype=torch.bfloat16) * 0.4)(D, F) * (D ** -0.5)),
            "w_down": _w((lambda *s: torch.randn(*s, dtype=torch.bfloat16) * 0.4)(F, D) * (F ** -0.5)),
        }
    _B_in = _B_setup()

    return {
        "A_x": _A_in["x"],
        "A_k_cache": _A_in["k_cache"],
        "A_v_cache": _A_in["v_cache"],
        "A_wq": _A_in["wq"],
        "A_wo": _A_in["wo"],
        "B_x": _B_in["x"],
        "B_w_gate": _B_in["w_gate"],
        "B_w_up": _B_in["w_up"],
        "B_w_down": _B_in["w_down"],
        "gate_w": _w((lambda *s: torch.randn(*s, dtype=torch.bfloat16) * 0.05)(640) * 16.0),
    }

def reference(A_x, A_k_cache, A_v_cache, A_wq, A_wo, B_x, B_w_gate, B_w_up, B_w_down, gate_w):
    def _A_ref(x, k_cache, v_cache, wq, wo):
        B, Sq, D = x.shape
        H, Dh = 32, 128
        q = (lambda x, *d: x.permute(*d))((x @ wq).reshape(B, Sq, H, Dh), 0, 2, 1, 3)
        scores = torch.einsum("bhqd,bhkd->bhqk", q, k_cache) * (Dh ** -0.5)
        p = _softmax(scores, axis=-1)
        o = torch.einsum("bhqk,bhkd->bhqd", p, v_cache)
        return (lambda x, *d: x.permute(*d))(o, 0, 2, 1, 3).reshape(B, Sq, H * Dh) @ wo

    def _B_ref(x, w_gate, w_up, w_down):
        g = torch.einsum("bsd,df->bsf", x, w_gate)
        u = torch.einsum("bsd,df->bsf", x, w_up)
        h = g * u
        return torch.einsum("bsf,fd->bsd", h, w_down)

    x = A_x
    g = _sigmoid((x * gate_w).sum(-1, keepdims=True))
    a = _A_ref(x, A_k_cache, A_v_cache, A_wq, A_wo)
    b = _B_ref(x, B_w_gate, B_w_up, B_w_down)
    return g * a + (1 - g) * b
```

```python
import re

TRANS = ("v_exp_f32", "v_log_f32", "v_rcp_f32", "v_rsq_f32", "v_sqrt_f32", "v_sin_f32", "v_cos_f32")


def regs_of(tok):
    tok = tok.strip()
    tok = tok.lstrip("-")
    m = re.fullmatch(r"abs\((.*)\)", tok)
    if m:
        tok = m.group(1)
    m = re.fullmatch(r"([vs])(\d+)", tok)
    if m:
        return [(m.group(1), int(m.group(2)))]
    m = re.fullmatch(r"([vs])\[(\d+):(\d+)\]", tok)
    if m:
        return [(m.group(1), i) for i in range(int(m.group(2)), int(m.group(3)) + 1)]
    if tok == "vcc":
        return [("s", 106), ("s", 107)]
    if tok == "exec":
        return [("s", 126), ("s", 127)]
    if tok == "m0":
        return [("s", 124)]
    return []


class Em:
    def __init__(self):
        self.lines = []
        self.t = 0
        self.valu_w = {}
        self.mfma_w = {}
        self.mfma_c = {}
        self.store_data = {}
        self.nops = 0

    def raw(self, s):
        self.lines.append(s)

    def label(self, name):
        self.nop(10)
        self.lines.append(name + ":")

    def nop(self, n):
        while n > 0:
            k = min(n, 16)
            self.lines.append(f"  s_nop {k-1}")
            self.t += k
            self.nops += k
            n -= k

    def comment(self, s):
        self.lines.append("  ; " + s)

    def I(self, text):
        text = text.strip()
        mn, _, rest = text.partition(" ")
        ops = [o.strip() for o in rest.split(",")] if rest else []
        mods = ""
        if ops:
            joined = []
            depth = 0
            cur = ""
            for ch in rest:
                if ch == "[":
                    depth += 1
                elif ch == "]":
                    depth -= 1
                if ch == "," and depth == 0:
                    joined.append(cur.strip())
                    cur = ""
                else:
                    cur += ch
            joined.append(cur.strip())
            ops = joined
            last = ops[-1].split(None, 1)
            if len(last) == 2:
                ops[-1] = last[0]
                mods = last[1]
        need = 0

        def req(tprod, n):
            nonlocal need
            need = max(need, tprod + 1 + n)

        is_mfma = mn.startswith("v_mfma")
        is_valu = mn.startswith("v_") and not is_mfma
        is_vmem = mn.startswith("buffer_") or mn.startswith("global_")
        is_ds = mn.startswith("ds_")
        reads, writes = [], []
        dpp_reads = []
        if is_mfma:
            D, A, B, C = (regs_of(o) for o in ops[:4])
            for r in A + B + C:
                if r in self.valu_w:
                    req(self.valu_w[r][0], 2)
            for r in A + B:
                if r in self.mfma_w:
                    req(self.mfma_w[r][0], 8)
            for r in C:
                if r in self.mfma_w and self.mfma_w[r][1] != tuple(C):
                    req(self.mfma_w[r][0], 6)
            for r in D:
                if r in self.mfma_w and self.mfma_w[r][1] != tuple(D):
                    req(self.mfma_w[r][0], 8)
        elif is_valu:
            base = mn.replace("_dpp", "").replace("_e32", "").replace("_e64", "")
            if base.startswith("v_permlane"):
                writes = regs_of(ops[0]) + regs_of(ops[1])
                reads = list(writes)
                for r in reads:
                    if r in self.valu_w:
                        req(self.valu_w[r][0], 2)
            else:
                writes = regs_of(ops[0])
                for o in ops[1:]:
                    reads += regs_of(o)
                if base in ("v_dot2c_f32_bf16", "v_fmac_f32") or mn.endswith("_dpp"):
                    reads += writes
                if base == "v_cndmask_b32" and len(ops) == 3:
                    reads += regs_of("vcc")
            if mn.endswith("_dpp"):
                for r in regs_of(ops[1]):
                    if r in self.valu_w:
                        req(self.valu_w[r][0], 2)
            for r in reads:
                if r in self.valu_w:
                    tp, pm = self.valu_w[r]
                    if pm.startswith("v_dot"):
                        isC = (pm == base) and (
                            (base == "v_dot2c_f32_bf16" and r in writes and r not in regs_of(ops[1]) + regs_of(ops[2]))
                            or (base == "v_dot2_f32_bf16" and r in regs_of(ops[3]) and r not in regs_of(ops[1]) + regs_of(ops[2])))
                        if not isC:
                            req(tp, 3)
                    if pm in TRANS and base not in TRANS:
                        req(tp, 1)
                    if r[0] == "s":
                        req(tp, 4 if base in ("v_readlane_b32", "v_writelane_b32") else 2)
                    if base in ("v_readfirstlane_b32", "v_readlane_b32") and r[0] == "v":
                        req(tp, 1)
                if r in self.mfma_w:
                    req(self.mfma_w[r][0], 8)
            for r in writes:
                if r in self.mfma_w:
                    req(self.mfma_w[r][0], 8)
                if r in self.mfma_c:
                    req(self.mfma_c[r], 3)
                if r in self.store_data:
                    req(self.store_data[r], 2)
                if r in self.valu_w and self.valu_w[r][1].startswith("v_dot") and self.valu_w[r][1] != base:
                    req(self.valu_w[r][0], 3)
        elif is_vmem or is_ds:
            allr = []
            for o in ops:
                allr += regs_of(o)
            for r in allr:
                if r[0] == "s" and r in self.valu_w:
                    req(self.valu_w[r][0], 5)
                if r in self.mfma_w:
                    req(self.mfma_w[r][0], 8)
                if r in self.valu_w and self.valu_w[r][1].startswith("v_dot"):
                    req(self.valu_w[r][0], 3)
                if r in self.valu_w and self.valu_w[r][1] in TRANS:
                    req(self.valu_w[r][0], 1)
            isload = ("load" in mn) or mn.startswith("ds_read")
            if isload:
                for r in regs_of(ops[0]):
                    if r in self.store_data:
                        req(self.store_data[r], 1)
                    if r in self.mfma_c:
                        req(self.mfma_c[r], 3)
        else:
            for o in ops:
                for r in regs_of(o):
                    if r[0] == "s" and r in self.valu_w:
                        req(self.valu_w[r][0], 1)
        if need > self.t:
            self.nop(need - self.t)
        if is_mfma:
            for r in D:
                self.mfma_w[r] = (self.t, tuple(D))
                self.valu_w.pop(r, None)
            for r in C:
                self.mfma_c[r] = self.t
        elif is_valu:
            for r in writes:
                self.valu_w[r] = (self.t, base)
                self.mfma_w.pop(r, None)
        elif is_vmem or is_ds:
            if ("load" in mn) or mn.startswith("ds_read"):
                for r in regs_of(ops[0]):
                    self.valu_w.pop(r, None)
                    self.mfma_w.pop(r, None)
            if "store" in mn and ("x4" in mn or "x3" in mn):
                for r in regs_of(ops[0]):
                    self.store_data[r] = self.t
        else:
            if ops and mn.startswith("s_") and not mn.startswith("s_cmp") and not mn.startswith("s_cbranch") \
                    and not mn.startswith("s_waitcnt") and not mn.startswith("s_nop"):
                for r in regs_of(ops[0]):
                    self.valu_w.pop(r, None)
        self.lines.append("  " + text)
        if mn == "s_nop":
            self.t += int(ops[0]) + 1
        else:
            self.t += 1

    def text(self):
        return "\n".join(self.lines) + "\n"
```

```python
import sys
from em import Em

P = dict(D=12, D1=16, PARK=36, WNT="nt", KVNT="nt", WOSTART=12, WOEVERY=1, DF=8, STAMP=0, FNT="nt")
for a in sys.argv[1:]:
    k, v = a.split("=")
    P[k] = v if not v.lstrip("-").isdigit() else int(v)

KN = "gated_mix__mha_block_cached__glu_gated_bilinear__decode"
KA = KN + "_kernel"
KB = "combine_kernel"
NFFN = 27
LOG2E = "0x3fb8aa3b"
SCALE = "0x3db504f3"
ML_OFF = 0
Y_OFF = 0x1000
F_OFF = 0x100000
F_END = F_OFF + NFFN * 10240
STAMP_OFF = 0x200000
WS_BYTES = 0x800000


def fl(x):
    return "" if x in ("0", 0, "") else " " + str(x).replace("+", " ")


e = Em()
I = e.I

S_W = 3
SRD_K, SRD_V, SRD_WQ, SRD_WO, SRD_X, SRD_WS = 44, 48, 52, 56, 60, 64
S_K, S_V, S_WQ, S_WO, S_X, S_REC, S_T0, S_T1, S_T2, S_T3 = 68, 69, 70, 71, 72, 73, 74, 75, 76, 77
S_LOG2E, S_SCALE, S_HI = 78, 79, 80
S_SAVE = 82
SRD_G, SRD_U, SRD_D = 44, 48, 52
S_ST = 84

V_KV, V_WQ, V_WO = 1, 2, 3
V_MASK = 4
V_Q = 8
V_B0, V_B1 = 12, 16
V_ACC = 20
V_M, V_L, V_NM = 24, 25, 26
V_X = 27
V_C = 30
V_Z01, V_Z23, V_W, V_R1, V_R2, V_P = 34, 35, 36, 37, 38, 39
V_LANE, V_T0, V_SIG, V_RHO, V_T1, V_T2, V_T3, V_LDSW = 40, 41, 42, 43, 44, 45, 46, 47
V_SC = 48
POOL0 = 80


def srd(base, plo, nbytes):
    I(f"s_mov_b32 s{base}, s{plo}")
    I(f"s_mov_b32 s{base+1}, s{plo+1}")
    I(f"s_mov_b32 s{base+2}, {nbytes}")
    I(f"s_mov_b32 s{base+3}, 0x00020000")


def q4(b):
    return f"v[{b}:{b+3}]"


class Sched:
    def __init__(self, free):
        self.free = list(free)
        self.count = 0
        self.done = 0
        self.idx = {}
        self.slot = {}

    def note(self, key=None):
        if key is not None:
            self.idx[key] = self.count
        self.count += 1

    def inflight(self):
        return self.count - self.done

    def take(self, key, pref=None):
        src = pref if pref else self.free
        s = src.pop(0)
        self.slot[key] = s
        self.idx[key] = self.count
        self.count += 1
        return s

    def wait(self, keys):
        need = max(self.idx[k] for k in keys) + 1
        if need > self.done:
            n = self.count - need
            assert n <= 63
            I(f"s_waitcnt vmcnt({n})")
            self.done = need

    def release(self, key, to=None):
        (to if to is not None else self.free).append(self.slot.pop(key))


def bbuild(B, src, bc):
    for i in range(4):
        I(f"v_and_b32_dpp v{B+i}, v{src}, v{V_MASK+i} row_newbcast:{bc} row_mask:0xf bank_mask:0xf")


def wave_allreduce(op, v, tmp):
    I(f"{op}_dpp v{v}, v{v}, v{v} row_ror:4 row_mask:0xf bank_mask:0xf")
    I(f"{op}_dpp v{v}, v{v}, v{v} row_ror:8 row_mask:0xf bank_mask:0xf")
    I(f"v_mov_b32 v{tmp}, v{v}")
    I(f"v_permlane16_swap_b32 v{v}, v{tmp}")
    I(f"{op} v{v}, v{v}, v{tmp}")
    I(f"v_mov_b32 v{tmp}, v{v}")
    I(f"v_permlane32_swap_b32 v{v}, v{tmp}")
    I(f"{op} v{v}, v{v}, v{tmp}")


def stamp(i):
    if P["STAMP"]:
        I(f"s_memrealtime s[{S_ST+2*i}:{S_ST+2*i+1}]")


def stamp_store(nwaves=4):
    if not P["STAMP"]:
        return
    I("s_waitcnt lgkmcnt(0)")
    I(f"s_getreg_b32 s{S_T0}, hwreg(HW_REG_HW_ID)")
    I(f"s_getreg_b32 s{S_T1}, hwreg(HW_REG_XCC_ID)")
    srd(SRD_X, 40, 0x100000)
    I(f"s_mul_i32 s{S_T2}, s2, {nwaves*32}")
    I(f"s_lshl_b32 s{S_T3}, s{S_W}, 5")
    I(f"s_add_u32 s{S_T2}, s{S_T2}, s{S_T3}")
    for j, s in enumerate([S_ST, S_ST + 1, S_ST + 6, S_ST + 7, S_T0, S_T1, S_ST + 2, S_ST + 4]):
        I(f"v_mov_b32 v{100+j}, s{s}")
    I("v_mov_b32 v108, 0")
    I(f"v_cmp_eq_u32 vcc, 0, v{V_LANE}")
    I(f"s_and_saveexec_b64 s[{S_SAVE}:{S_SAVE+1}], vcc")
    I(f"buffer_store_dwordx4 v[100:103], v108, s[{SRD_X}:{SRD_X+3}], s{S_T2} offen")
    I(f"buffer_store_dwordx4 v[104:107], v108, s[{SRD_X}:{SRD_X+3}], s{S_T2} offen offset:16")


WSO = 0x300000 if P["STAMP"] else 0

hdr = []
hdr.append(f"; @launch kernel={KA} grid=({256+NFFN},1,1) block=(256,1,1) lds=41984")
hdr.append(f"; @launch kernel={KB} grid=(40,1,1) block=(256,1,1) lds=2048")
hdr.append('.amdgcn_target "amdgcn-amd-amdhsa--gfx950"')
hdr.append(".text")
hdr.append(f".globl {KA}")
hdr.append(".p2align 8")
hdr.append(f".type {KA},@function")
hdr.append(f"{KA}:")
for h in hdr:
    e.raw(h)

I(f"s_cmp_ge_u32 s2, {256+NFFN}")
I("s_cbranch_scc1 L_endA")
stamp(0)
I("s_load_dwordx16 s[16:31], s[0:1], 0")
I("s_load_dwordx8 s[32:39], s[0:1], 64")
I("s_load_dwordx2 s[40:41], s[0:1], 96")
I(f"v_and_b32 v{V_LANE}, 63, v0")
I(f"v_lshrrev_b32 v{V_T0}, 6, v0")
I(f"v_readfirstlane_b32 s{S_W}, v{V_T0}")
I(f"v_lshrrev_b32 v{V_SIG}, 4, v{V_LANE}")
I(f"v_and_b32 v{V_RHO}, 15, v{V_LANE}")
I(f"v_lshlrev_b32 v{V_KV}, 4, v{V_LANE}")
I(f"v_mul_u32_u24 v{V_WO}, 1280, v{V_SIG}")
I(f"v_lshl_add_u32 v{V_WO}, v{V_RHO}, 4, v{V_WO}")
I(f"v_and_b32 v{V_T1}, 7, v{V_LANE}")
I(f"v_lshrrev_b32 v{V_T2}, 1, v{V_T1}")
I(f"v_and_b32 v{V_T3}, 1, v{V_LANE}")
I(f"v_lshlrev_b32 v{V_T3}, 4, v{V_T3}")
I(f"v_mov_b32 v{V_T0}, 0xffff")
I(f"v_lshlrev_b32 v{V_T3}, v{V_T3}, v{V_T0}")
for i in range(4):
    I(f"v_cmp_eq_u32 vcc, {i}, v{V_T2}")
    I(f"v_cndmask_b32 v{V_MASK+i}, 0, v{V_T3}, vcc")
I(f"v_lshl_add_u32 v{V_LDSW}, v{V_SIG}, 5, v{V_T1}")
I(f"v_lshlrev_b32 v{V_LDSW}, 2, v{V_LDSW}")
I(f"s_mov_b32 s{S_LOG2E}, {LOG2E}")
I(f"s_mov_b32 s{S_SCALE}, {SCALE}")
I(f"s_mov_b32 s{S_HI}, 0xffff0000")
I("s_waitcnt lgkmcnt(0)")
srd(SRD_X, 16, 5120)
srd(SRD_WS, 40, WS_BYTES)
I("s_cmp_ge_u32 s2, 256")
I("s_cbranch_scc1 L_ffn")

I(f"s_and_b32 s{S_T0}, s2, 7")
I(f"s_lshr_b32 s{S_T1}, s2, 3")
I(f"s_and_b32 s{S_T2}, s{S_T1}, 3")
I(f"s_lshl_b32 s{S_T0}, s{S_T0}, 2")
I(f"s_add_u32 s{S_T0}, s{S_T0}, s{S_T2}")
I(f"s_lshr_b32 s{S_T1}, s{S_T1}, 2")
I(f"s_lshr_b32 s{S_T2}, s{S_T1}, 1")
I(f"s_and_b32 s{S_T1}, s{S_T1}, 1")
I(f"s_lshl_b32 s{S_REC}, s{S_T2}, 5")
I(f"s_add_u32 s{S_REC}, s{S_REC}, s{S_T0}")
I(f"s_lshl_b32 s{S_REC}, s{S_REC}, 1")
I(f"s_add_u32 s{S_REC}, s{S_REC}, s{S_T1}")
srd(SRD_WQ, 22, 5242880)
I(f"s_mul_i32 s{S_X}, s{S_T2}, 1280")
I(f"s_mul_i32 s{S_T3}, s{S_W}, 320")
I(f"s_add_u32 s{S_X}, s{S_X}, s{S_T3}")
I(f"v_lshl_add_u32 v{V_T0}, v{V_RHO}, 2, v{V_SIG}")
I(f"v_lshlrev_b32 v{V_T0}, 1, v{V_T0}")
sc = Sched([POOL0 + 4 * i for i in range((256 - POOL0) // 4)])
for T in range(3):
    I(f"buffer_load_ushort v{V_X+T}, v{V_T0}, s[{SRD_X}:{SRD_X+3}], s{S_X} offen offset:{T*128}")
    sc.note(("x", T))
I(f"s_lshl_b32 s{S_WQ}, s{S_T0}, 8")
I(f"s_mul_i32 s{S_T3}, s{S_W}, {160*8192}")
I(f"s_add_u32 s{S_WQ}, s{S_WQ}, s{S_T3}")
I(f"v_lshlrev_b32 v{V_WQ}, 13, v{V_SIG}")
I(f"v_lshl_add_u32 v{V_WQ}, v{V_RHO}, 4, v{V_WQ}")
srd(SRD_K, 18, 0x8000000)
srd(SRD_V, 20, 0x8000000)
srd(SRD_WO, 24, 5242880)
I(f"s_lshl_b32 s{S_K}, s{S_REC}, 19")
I(f"s_lshl_b32 s{S_T3}, s{S_W}, 12")
I(f"s_add_u32 s{S_K}, s{S_K}, s{S_T3}")
I(f"s_mov_b32 s{S_V}, s{S_K}")
I(f"s_lshl_b32 s{S_WO}, s{S_T0}, 7")
I(f"s_lshl_b32 s{S_T3}, s{S_W}, 5")
I(f"s_add_u32 s{S_WO}, s{S_WO}, s{S_T3}")
I(f"s_mul_i32 s{S_WO}, s{S_WO}, 1280")

score_slots = [V_SC + 4 * i for i in range(8)]


def issue(key, pref=None):
    kind = key[0]
    s = sc.take(key, pref)
    if kind == "wq":
        I(f"buffer_load_dwordx4 {q4(s)}, v{V_WQ}, s[{SRD_WQ}:{SRD_WQ+3}], s{S_WQ} offen{fl(P['WNT'])}")
        if key[1] < 39:
            I(f"s_add_u32 s{S_WQ}, s{S_WQ}, 32768")
    elif kind in ("k", "v"):
        srdn, sreg = (SRD_K, S_K) if kind == "k" else (SRD_V, S_V)
        t = key[1] & 3
        I(f"buffer_load_dwordx4 {q4(s)}, v{V_KV}, s[{srdn}:{srdn+3}], s{sreg} offen offset:{t*1024}{fl(P['KVNT'])}")
        if t == 3 and key[1] < 127:
            I(f"s_add_u32 s{sreg}, s{sreg}, 16384")
    elif kind == "wo":
        i, c = key[1], key[2]
        I(f"buffer_load_dwordx4 {q4(s)}, v{V_WO}, s[{SRD_WO}:{SRD_WO+3}], s{S_WO} offen offset:{c*256}{fl(P['WNT'])}")
        if c == 4 and i < 7:
            I(f"s_add_u32 s{S_WO}, s{S_WO}, 5120")


main = []
nk = 0
for g in range(10):
    main += [("wq", 4 * g + t) for t in range(4)]
    if nk < P["PARK"]:
        main += [("k", nk + t) for t in range(4)]
        nk += 4
main += [("k", n) for n in range(nk, 128)]
main += [("v", n) for n in range(128)]
side = [("wo", i, c) for i in range(8) for c in range(5)]
mp = 0
state = dict(D=P["D1"], side_due=0)


def fill(maxn=99):
    global mp
    n = 0
    while mp < len(main) and sc.inflight() < state["D"] and n < maxn:
        key = main[mp]
        if key[0] == "wq" and score_slots:
            issue(key, score_slots)
        elif sc.free:
            issue(key)
        else:
            break
        mp += 1
        n += 1
    while side and state["side_due"] > 0 and n < maxn:
        remaining_main = len(main) - mp
        reserve = min(remaining_main, max(0, state["D"] - 0))
        if len(sc.free) > max(0, min(remaining_main, state["D"]) - main_held()):
            issue(side.pop(0))
            state["side_due"] -= 1
            n += 1
        else:
            break
    return n


def main_held():
    return sum(1 for k in sc.slot if k[0] in ("k", "v"))


fill()
sc.wait([("x", 2)])
for T in range(3):
    I(f"v_lshl_or_b32 v{V_X+T}, v{V_X+T}, 16, v{V_X+T}")


def pv_like(keys, coef, acc, first, release_to=None):
    sc.wait(keys)
    Bs = [V_B0, V_B1]
    n = len(keys)
    bbuild(Bs[0], *coef(0))
    if n > 1:
        bbuild(Bs[1], *coef(1))
    for t in range(n):
        a = acc(t)
        c = "0" if (first and first(t)) else q4(a)
        I(f"v_mfma_f32_16x16x32_bf16 {q4(a)}, {q4(sc.slot[keys[t]])}, {q4(Bs[t&1])}, {c}")
        k = keys[t]
        to = release_to(k) if release_to else None
        sc.release(k, to)
        if t + 2 < n:
            bbuild(Bs[t & 1], *coef(t + 2))
        else:
            fill(2)
    fill()


def wq_rel(k):
    return score_slots if V_SC <= sc.slot[k] < V_SC + 32 else None


for g in range(10):
    keys = [("wq", 4 * g + t) for t in range(4)]
    pv_like(keys, lambda t: (V_X + (4 * g + t) // 16, (4 * g + t) % 16), lambda t: V_ACC,
            lambda t: g == 0 and t == 0, wq_rel)
score_slots.clear()
state["D"] = P["D"]
I(f"s_lshl_b32 s{S_T3}, s{S_W}, 9")
I(f"v_add_u32 v{V_T0}, s{S_T3}, v{V_LDSW}")
for r in range(4):
    I(f"ds_write_b32 v{V_T0}, v{V_ACC+r} offset:{r*32}")
I(f"v_lshlrev_b32 v{V_T1}, 5, v{V_RHO}")
I("s_waitcnt lgkmcnt(0)")
I("s_barrier")
for w in range(4):
    I(f"ds_read_b128 {q4(V_SC+8*w)}, v{V_T1} offset:{w*512}")
    I(f"ds_read_b128 {q4(V_SC+8*w+4)}, v{V_T1} offset:{w*512+16}")
I("s_waitcnt lgkmcnt(4)")
for j in range(8):
    I(f"v_add_f32 v{V_SC+j}, v{V_SC+j}, v{V_SC+8+j}")
I("s_waitcnt lgkmcnt(0)")
for j in range(8):
    I(f"v_add_f32 v{V_SC+16+j}, v{V_SC+16+j}, v{V_SC+24+j}")
for j in range(8):
    I(f"v_add_f32 v{V_SC+j}, v{V_SC+j}, v{V_SC+16+j}")
for j in range(4):
    I(f"v_cvt_pk_bf16_f32 v{V_Q+j}, v{V_SC+2*j}, v{V_SC+2*j+1}")
I(f"v_mov_b32 v{V_M}, 0xff7fffff")
I(f"v_mov_b32 v{V_L}, 0")
stamp(1)

BANK_OF_T = [0, 2, 1, 3]


def post_score(T):
    I(f"v_cvt_pk_bf16_f32 v{V_R1}, v{V_SC+T}, v{V_SC+T}")
    I(f"v_and_b32 v{V_R1}, s{S_HI}, v{V_R1}")
    I(f"v_mul_f32 v{V_R1}, s{S_SCALE}, v{V_R1}")
    I(f"v_cvt_pk_bf16_f32 v{V_R1}, v{V_R1}, v{V_R1}")
    I(f"v_and_b32 v{V_SC+T}, s{S_HI}, v{V_R1}")
    I(f"v_max_f32 v{V_M}, v{V_M}, v{V_SC+T}")


for T in range(32):
    keys = [("k", 4 * T + t) for t in range(4)]
    sc.wait(keys)
    for j in range(4):
        for t in range(4):
            a = sc.slot[keys[t]] + j
            if j == 0:
                I(f"v_dot2_f32_bf16 v{V_C+t}, v{a}, v{V_Q}, 0")
            else:
                I(f"v_dot2c_f32_bf16 v{V_C+t}, v{a}, v{V_Q+j}")
    for k in keys:
        sc.release(k)
    if T >= P["WOSTART"] and (T - P["WOSTART"]) % P["WOEVERY"] == 0:
        state["side_due"] += 1
    fill(1)
    I(f"v_add_f32_dpp v{V_Z01}, v{V_C}, v{V_C} row_ror:8 row_mask:0xf bank_mask:0x3")
    I(f"v_add_f32_dpp v{V_Z01}, v{V_C+1}, v{V_C+1} row_ror:8 row_mask:0xf bank_mask:0xc")
    I(f"v_add_f32_dpp v{V_Z23}, v{V_C+2}, v{V_C+2} row_ror:8 row_mask:0xf bank_mask:0x3")
    I(f"v_add_f32_dpp v{V_Z23}, v{V_C+3}, v{V_C+3} row_ror:8 row_mask:0xf bank_mask:0xc")
    fill(1)
    I(f"v_add_f32_dpp v{V_W}, v{V_Z01}, v{V_Z01} row_ror:12 row_mask:0xf bank_mask:0x5")
    I(f"v_add_f32_dpp v{V_W}, v{V_Z23}, v{V_Z23} row_ror:4 row_mask:0xf bank_mask:0xa")
    fill(2)
    if T > 0:
        post_score(T - 1)
    I(f"v_add_f32_dpp v{V_W}, v{V_W}, v{V_W} quad_perm:[2,3,0,1] row_mask:0xf bank_mask:0xf")
    fill()
    I(f"v_add_f32_dpp v{V_SC+T}, v{V_W}, v{V_W} quad_perm:[1,0,3,2] row_mask:0xf bank_mask:0xf")
post_score(31)
wave_allreduce("v_max_f32", V_M, V_T0)
I(f"v_mul_f32 v{V_NM}, s{S_LOG2E}, v{V_M}")
I(f"v_sub_f32 v{V_NM}, 0, v{V_NM}")
stamp(2)


def make_p(T):
    I(f"v_fma_f32 v{V_P}, v{V_SC+T}, s{S_LOG2E}, v{V_NM}")
    I(f"v_exp_f32 v{V_P}, v{V_P}")
    I(f"v_cvt_pk_bf16_f32 v{V_SC+T}, v{V_P}, v{V_P}")
    I(f"v_add_f32 v{V_L}, v{V_L}, v{V_P}")


make_p(0)
for T in range(32):
    keys = [("v", 4 * T + t) for t in range(4)]
    if T + 1 < 32:
        make_p(T + 1)
    state["side_due"] += 1
    pv_like(keys, lambda t: (V_SC + T, 4 * BANK_OF_T[t]), lambda t: V_ACC, lambda t: T == 0 and t == 0)
    if T % 4 == 3:
        sc.free.append(V_SC + T - 3)
        fill()
state["side_due"] = 99
fill()
assert not side and mp == len(main), (side, mp)
wave_allreduce("v_add_f32", V_L, V_T0)
I(f"s_lshl_b32 s{S_T3}, s{S_W}, 9")
I(f"v_add_u32 v{V_T0}, s{S_T3}, v{V_LDSW}")
for r in range(4):
    I(f"ds_write_b32 v{V_T0}, v{V_ACC+r} offset:{2048+r*32}")
I(f"s_lshl_b32 s{S_T3}, s{S_W}, 3")
I(f"v_mov_b32 v{V_T1}, s{S_T3}")
I(f"ds_write_b64 v{V_T1}, v[{V_M}:{V_L}] offset:4096")
I(f"v_and_b32 v{V_T2}, 7, v{V_RHO}")
I(f"v_lshl_add_u32 v{V_T2}, v{V_T2}, 2, v{V_SIG}")
I(f"s_lshl_b32 s{S_T3}, s{S_W}, 5")
I(f"v_add_u32 v{V_T2}, s{S_T3}, v{V_T2}")
I(f"v_lshlrev_b32 v{V_T2}, 2, v{V_T2}")
I(f"v_mov_b32 v{V_T3}, 0")
I("s_waitcnt lgkmcnt(0)")
I("s_barrier")
MLR = [V_B0, V_B1]
I(f"ds_read_b128 {q4(V_B0)}, v{V_T3} offset:4096")
I(f"ds_read_b128 {q4(V_B1)}, v{V_T3} offset:4112")
for w in range(4):
    I(f"ds_read_b32 v{V_C+w}, v{V_T2} offset:{2048+w*512}")
I("s_waitcnt lgkmcnt(4)")
ms = [V_B0, V_B0 + 2, V_B1, V_B1 + 2]
ls = [V_B0 + 1, V_B0 + 3, V_B1 + 1, V_B1 + 3]
I(f"v_max3_f32 v{V_M}, v{ms[0]}, v{ms[1]}, v{ms[2]}")
I(f"v_max_f32 v{V_M}, v{V_M}, v{ms[3]}")
for w in range(4):
    I(f"v_sub_f32 v{ms[w]}, v{ms[w]}, v{V_M}")
for w in range(4):
    I(f"v_mul_f32 v{ms[w]}, s{S_LOG2E}, v{ms[w]}")
for w in range(4):
    I(f"v_exp_f32 v{ms[w]}, v{ms[w]}")
I(f"v_mul_f32 v{V_L}, v{ms[0]}, v{ls[0]}")
for w in range(1, 4):
    I(f"v_fmac_f32 v{V_L}, v{ms[w]}, v{ls[w]}")
I("s_waitcnt lgkmcnt(0)")
I(f"v_mul_f32 v{V_P}, v{ms[0]}, v{V_C}")
for w in range(1, 4):
    I(f"v_fmac_f32 v{V_P}, v{ms[w]}, v{V_C+w}")
I(f"v_cvt_pk_bf16_f32 v{V_NM}, v{V_P}, v{V_P}")
OACC = [V_Q, V_ACC, 28, 32, 36]
sc.wait([("wo", 7, 4)])
Bs = [V_B0, V_B1]
bbuild(Bs[0], V_NM, 0)
for i in range(8):
    if i + 1 < 8:
        bbuild(Bs[(i + 1) & 1], V_NM, i + 1)
    for c in range(5):
        a = OACC[c]
        cc = "0" if i == 0 else q4(a)
        I(f"v_mfma_f32_16x16x32_bf16 {q4(a)}, {q4(sc.slot[('wo', i, c)])}, {q4(Bs[i&1])}, {cc}")
I(f"s_mul_i32 s{S_T3}, s{S_W}, 2560")
I(f"v_add_u32 v{V_T0}, s{S_T3}, v{V_LDSW}")
I(f"s_mul_i32 s{S_T3}, s{S_W}, 640")
I(f"v_add_u32 v{V_T1}, s{S_T3}, v{V_KV}")
I(f"s_mul_i32 s{S_T2}, s{S_REC}, 2560")
I(f"s_add_u32 s{S_T2}, s{S_T2}, s{S_T3}")
I(f"s_add_u32 s{S_T2}, s{S_T2}, {Y_OFF+WSO}")
for c in range(5):
    for r in range(4):
        I(f"ds_write_b32 v{V_T0}, v{OACC[c]+r} offset:{4608+c*512+r*32}")
I("s_waitcnt lgkmcnt(0)")
I("s_barrier")
I(f"v_cmp_gt_u32 vcc, 40, v{V_LANE}")
I(f"s_and_saveexec_b64 s[{S_SAVE}:{S_SAVE+1}], vcc")
R = POOL0
for w in range(4):
    I(f"ds_read_b128 {q4(R+4*w)}, v{V_T1} offset:{4608+w*2560}")
I("s_waitcnt lgkmcnt(2)")
for j in range(4):
    I(f"v_add_f32 v{R+j}, v{R+j}, v{R+4+j}")
I("s_waitcnt lgkmcnt(0)")
for j in range(4):
    I(f"v_add_f32 v{R+8+j}, v{R+8+j}, v{R+12+j}")
for j in range(4):
    I(f"v_add_f32 v{R+j}, v{R+j}, v{R+8+j}")
I(f"buffer_store_dwordx4 {q4(R)}, v{V_KV}, s[{SRD_WS}:{SRD_WS+3}], s{S_T2} offen")
I(f"s_mov_b64 exec, s[{S_SAVE}:{S_SAVE+1}]")
I(f"v_cmp_eq_u32 vcc, 0, v0")
I(f"s_and_saveexec_b64 s[{S_SAVE}:{S_SAVE+1}], vcc")
I("s_cbranch_execz L_skipml")
I(f"s_lshl_b32 s{S_T2}, s{S_REC}, 3")
if WSO:
    I(f"s_add_u32 s{S_T2}, s{S_T2}, {WSO}")
I(f"buffer_store_dwordx2 v[{V_M}:{V_L}], v{V_T3}, s[{SRD_WS}:{SRD_WS+3}], s{S_T2} offen offset:{ML_OFF}")
e.label("L_skipml")
I(f"s_mov_b64 exec, s[{S_SAVE}:{S_SAVE+1}]")
if P["STAMP"]:
    I("s_waitcnt vmcnt(0)")
    stamp(3)
    stamp_store()
I("s_endpgm")

e.label("L_ffn")
S_J = S_REC
S_G, S_U, S_D = S_K, S_V, S_WO
I(f"s_sub_u32 s{S_J}, s2, 256")
srd(SRD_G, 28, 2211840)
srd(SRD_U, 30, 2211840)
srd(SRD_D, 32, 2211840)
V_XF = V_SC
V_GU = V_SC + 12
FPOOL0 = 96
V_Y = V_C
V_UU, V_CC = V_Z01, V_Z23
I(f"v_lshrrev_b32 v{V_UU}, 3, v{V_RHO}")
I(f"v_and_b32 v{V_CC}, 7, v{V_LANE}")
I(f"v_lshl_add_u32 v{V_T0}, v{V_UU}, 2, v{V_SIG}")
I(f"v_lshl_add_u32 v{V_T1}, v{V_CC}, 3, v{V_T0}")
I(f"v_lshlrev_b32 v{V_T1}, 1, v{V_T1}")
I(f"s_mul_i32 s{S_X}, s{S_W}, 320")
sf = Sched([FPOOL0 + 4 * i for i in range((256 - FPOOL0) // 4)])
sc = sf
for b in range(4):
    for T in range(3):
        I(f"buffer_load_ushort v{V_XF+3*b+T}, v{V_T1}, s[{SRD_X}:{SRD_X+3}], s{S_X} offen offset:{(b&1)*1280+T*128}")
        sf.note(("x", b, T))
    if b == 1:
        I(f"s_add_u32 s{S_X}, s{S_X}, 2560")
I(f"v_mul_u32_u24 v{V_WQ}, 3456, v{V_T0}")
I(f"v_lshl_add_u32 v{V_WQ}, v{V_CC}, 4, v{V_WQ}")
I(f"s_mul_i32 s{S_G}, s{S_W}, {160*3456}")
I(f"s_lshl_b32 s{S_T3}, s{S_J}, 7")
I(f"s_add_u32 s{S_G}, s{S_G}, s{S_T3}")
I(f"s_mov_b32 s{S_U}, s{S_G}")
I(f"s_lshl_b32 s{S_D}, s{S_J}, 6")
I(f"s_lshl_b32 s{S_T3}, s{S_W}, 4")
I(f"s_add_u32 s{S_D}, s{S_D}, s{S_T3}")
I(f"s_mul_i32 s{S_D}, s{S_D}, 1280")
fmain = []
dl = [("d", i, c) for i in range(4) for c in range(5)]
for i in range(20):
    fmain += [("g", i), ("u", i), dl[i]]
fp = 0


def ffill(extra=0):
    global fp
    while fp < len(fmain) and sf.inflight() < P["DF"] + extra and sf.free:
        key = fmain[fp]
        s = sf.take(key)
        if key[0] in ("g", "u"):
            srdn, sreg = (SRD_G, S_G) if key[0] == "g" else (SRD_U, S_U)
            I(f"buffer_load_dwordx4 {q4(s)}, v{V_WQ}, s[{srdn}:{srdn+3}], s{sreg} offen{fl(P['FNT'])}")
            if key[1] < 19:
                I(f"s_add_u32 s{sreg}, s{sreg}, {8*3456}")
        else:
            i, c = key[1], key[2]
            I(f"buffer_load_dwordx4 {q4(s)}, v{V_WO}, s[{SRD_D}:{SRD_D+3}], s{S_D} offen offset:{c*256}{fl(P['FNT'])}")
            if c == 4 and i < 3:
                I(f"s_add_u32 s{S_D}, s{S_D}, 5120")
        fp += 1


ffill(12)
sf.wait([("x", 3, 2)])
for r in range(12):
    I(f"v_lshl_or_b32 v{V_XF+r}, v{V_XF+r}, 16, v{V_XF+r}")
for i in range(20):
    sf.wait([("g", i), ("u", i)])
    T, c = i // 8, i % 8
    for b in range(4):
        B = [V_B0, V_B1][b & 1]
        y = V_Y + (b & 1)
        I(f"v_mov_b32_dpp v{y}, v{V_XF+3*b+T} row_newbcast:{c} row_mask:0xf bank_mask:0x3")
        I(f"v_mov_b32_dpp v{y}, v{V_XF+3*b+T} row_newbcast:{8+c} row_mask:0xf bank_mask:0xc")
        for k in range(4):
            I(f"v_and_b32 v{B+k}, v{y}, v{V_MASK+k}")
        for m, kind in enumerate(("g", "u")):
            a = V_GU + 8 * b + 4 * m
            cc = "0" if i == 0 else q4(a)
            I(f"v_mfma_f32_16x16x32_bf16 {q4(a)}, {q4(sf.slot[(kind, i)])}, {q4(B)}, {cc}")
    sf.release(("g", i))
    sf.release(("u", i))
    ffill(99 if i == 19 else 0)
I(f"v_lshrrev_b32 v{V_T0}, 1, v{V_SIG}")
I(f"v_and_b32 v{V_T1}, 1, v{V_SIG}")
I(f"v_lshl_add_u32 v{V_T1}, v{V_T1}, 5, v{V_CC}")
I(f"v_lshlrev_b32 v{V_T1}, 2, v{V_T1}")
I(f"v_lshl_add_u32 v{V_T1}, v{V_T0}, 11, v{V_T1}")
I(f"s_lshl_b32 s{S_T3}, s{S_W}, 12")
I(f"v_add_u32 v{V_T1}, s{S_T3}, v{V_T1}")
I(f"v_cmp_eq_u32 vcc, v{V_T0}, v{V_UU}")
I(f"s_and_saveexec_b64 s[{S_SAVE}:{S_SAVE+1}], vcc")
for b in range(4):
    for m in range(2):
        for r in range(4):
            I(f"ds_write_b32 v{V_T1}, v{V_GU+8*b+4*m+r} offset:{(m*4+b)*256+r*32}")
I(f"s_mov_b64 exec, s[{S_SAVE}:{S_SAVE+1}]")
I(f"v_lshlrev_b32 v{V_T2}, 2, v0")
I("s_waitcnt lgkmcnt(0)")
I("s_barrier")
RG = V_GU
for m in range(2):
    for wu in range(8):
        I(f"ds_read_b32 v{RG+8*m+wu}, v{V_T2} offset:{wu*2048+m*1024}")
for m in range(2):
    I(f"s_waitcnt lgkmcnt({8 if m == 0 else 0})")
    r = RG + 8 * m
    for a, b_ in ((0, 1), (2, 3), (4, 5), (6, 7), (0, 2), (4, 6), (0, 4)):
        I(f"v_add_f32 v{r+a}, v{r+a}, v{r+b_}")
I(f"v_cvt_pk_bf16_f32 v{V_T0}, v{RG}, v{RG+8}")
I(f"v_lshlrev_b32 v{V_T1}, 16, v{V_T0}")
I(f"v_and_b32 v{V_T0}, s{S_HI}, v{V_T0}")
I(f"v_mul_f32 v{V_T0}, v{V_T0}, v{V_T1}")
I(f"v_cvt_pk_bf16_f32 v{V_T0}, v{V_T0}, v{V_T0}")
I(f"ds_write_b32 v{V_T2}, v{V_T0} offset:40960")
I(f"v_lshl_add_u32 v{V_T3}, v{V_UU}, 6, v{V_SIG}")
I(f"s_lshl_b32 s{S_T3}, s{S_W}, 4")
I(f"v_add_u32 v{V_T3}, s{S_T3}, v{V_T3}")
I(f"v_lshlrev_b32 v{V_T3}, 2, v{V_T3}")
I("s_waitcnt lgkmcnt(0)")
I("s_barrier")
HC = V_XF
for be in range(2):
    for i in range(4):
        I(f"ds_read_b32 v{HC+4*be+i}, v{V_T3} offset:{40960+be*512+i*16}")
DACC = 56
sf.wait([("d", 3, 4)])
I("s_waitcnt lgkmcnt(0)")
n = 0
for i in range(4):
    for be in range(2):
        B = [V_B0, V_B1][n & 1]
        n += 1
        for k in range(4):
            I(f"v_and_b32 v{B+k}, v{HC+4*be+i}, v{V_MASK+k}")
        for c in range(5):
            a = DACC + (be * 5 + c) * 4
            cc = "0" if i == 0 else q4(a)
            I(f"v_mfma_f32_16x16x32_bf16 {q4(a)}, {q4(sf.slot[('d', i, c)])}, {q4(B)}, {cc}")
I(f"v_mul_u32_u24 v{V_T0}, 2560, v{V_UU}")
I(f"v_add_u32 v{V_T0}, v{V_T0}, v{V_LDSW}")
I(f"s_mul_i32 s{S_T3}, s{S_W}, 10240")
I(f"v_add_u32 v{V_T0}, s{S_T3}, v{V_T0}")
for be in range(2):
    for c in range(5):
        for r in range(4):
            I(f"ds_write_b32 v{V_T0}, v{DACC+(be*5+c)*4+r} offset:{be*5120+c*512+r*32}")
I(f"v_lshlrev_b32 v{V_T1}, 4, v0")
I(f"s_mul_i32 s{S_T2}, s{S_J}, 10240")
I(f"s_add_u32 s{S_T2}, s{S_T2}, {F_OFF+WSO}")
I("s_waitcnt lgkmcnt(0)")
I("s_barrier")
R = FPOOL0
for rd in range(3):
    if rd == 2:
        I(f"v_cmp_gt_u32 vcc, 128, v0")
        I(f"s_and_saveexec_b64 s[{S_SAVE}:{S_SAVE+1}], vcc")
        I("s_cbranch_execz L_ffn_done")
    Rr = R + 16 * rd
    for w in range(4):
        I(f"ds_read_b128 {q4(Rr+4*w)}, v{V_T1} offset:{w*10240+rd*4096}")
    I("s_waitcnt lgkmcnt(0)")
    for j in range(4):
        I(f"v_add_f32 v{Rr+j}, v{Rr+j}, v{Rr+4+j}")
        I(f"v_add_f32 v{Rr+8+j}, v{Rr+8+j}, v{Rr+12+j}")
    for j in range(4):
        I(f"v_add_f32 v{Rr+j}, v{Rr+j}, v{Rr+8+j}")
    if rd == 0:
        I(f"buffer_store_dwordx4 {q4(Rr)}, v{V_T1}, s[{SRD_WS}:{SRD_WS+3}], s{S_T2} offen")
    else:
        I(f"s_add_u32 s{S_T2}, s{S_T2}, 4096")
        I(f"buffer_store_dwordx4 {q4(Rr)}, v{V_T1}, s[{SRD_WS}:{SRD_WS+3}], s{S_T2} offen")
e.label("L_ffn_done")
if P["STAMP"]:
    I("s_mov_b64 exec, -1")
    I("s_waitcnt vmcnt(0)")
    stamp(1)
    stamp(2)
    stamp(3)
    stamp_store()
e.raw("L_endA:")
I("s_endpgm")

e.raw(f".globl {KB}")
e.raw(".p2align 8")
e.raw(f".type {KB},@function")
e.raw(f"{KB}:")
I("s_cmp_ge_u32 s2, 40")
I("s_cbranch_scc1 L_endB")
I("s_load_dwordx2 s[16:17], s[0:1], 0")
I("s_load_dwordx4 s[36:39], s[0:1], 72")
I("s_load_dwordx2 s[40:41], s[0:1], 96")
I(f"v_and_b32 v{V_LANE}, 63, v0")
I(f"v_lshrrev_b32 v{V_T0}, 6, v0")
I(f"v_readfirstlane_b32 s{S_W}, v{V_T0}")
I(f"v_lshlrev_b32 v1, 2, v{V_LANE}")
I(f"s_mul_i32 s{S_T0}, s2, 205")
I(f"s_lshr_b32 s{S_T0}, s{S_T0}, 11")
I(f"s_mul_i32 s{S_T1}, s{S_T0}, 10")
I(f"s_sub_u32 s{S_T1}, s2, s{S_T1}")
I(f"s_mov_b32 s{S_LOG2E}, {LOG2E}")
I(f"s_mov_b32 s{S_HI}, 0xffff0000")
I("s_waitcnt lgkmcnt(0)")
srd(SRD_WS, 40, F_END + WSO)
srd(SRD_X, 16, 5120)
srd(SRD_K, 36, 1280)
srd(SRD_V, 38, 5120)
I(f"s_lshl_b32 s{S_REC}, s{S_T0}, 6")
I(f"s_lshl_b32 s{S_T3}, s{S_W}, 4")
I(f"s_add_u32 s{S_REC}, s{S_REC}, s{S_T3}")
I(f"s_lshl_b32 s{S_T2}, s{S_REC}, 3")
if WSO:
    I(f"s_add_u32 s{S_T2}, s{S_T2}, {WSO}")
I(f"s_add_u32 s4, s40, s{S_T2}")
I(f"s_addc_u32 s5, s41, 0")
I(f"s_load_dwordx16 s[8:23], s[4:5], {ML_OFF}")
I(f"s_mul_i32 s{S_K}, s{S_REC}, 2560")
I(f"s_lshl_b32 s{S_T3}, s{S_T1}, 8")
I(f"s_add_u32 s{S_K}, s{S_K}, s{S_T3}")
I(f"s_add_u32 s{S_K}, s{S_K}, {Y_OFF+WSO}")
YR = 48
for r in range(16):
    I(f"buffer_load_dword v{YR+r}, v1, s[{SRD_WS}:{SRD_WS+3}], s{S_K} offen offset:{(r&1)*2560}")
    if r & 1 and r < 15:
        I(f"s_add_u32 s{S_K}, s{S_K}, 5120")
I(f"s_mul_i32 s{S_V}, s{S_W}, 10240")
I(f"s_mul_i32 s{S_T2}, s{S_T0}, 2560")
I(f"s_add_u32 s{S_V}, s{S_V}, s{S_T2}")
I(f"s_add_u32 s{S_V}, s{S_V}, s{S_T3}")
I(f"s_add_u32 s{S_V}, s{S_V}, {F_OFF+WSO}")
FR = 64
for n in range(7):
    I(f"buffer_load_dword v{FR+n}, v1, s[{SRD_WS}:{SRD_WS+3}], s{S_V} offen")
    if n < 6:
        I(f"s_add_u32 s{S_V}, s{S_V}, 40960")
I(f"v_mul_u32_u24 v2, 20, v{V_LANE}")
I(f"s_mul_i32 s{S_X}, s{S_T0}, 1280")
GX, GW = 72, 80
I(f"buffer_load_dwordx4 {q4(GX)}, v2, s[{SRD_X}:{SRD_X+3}], s{S_X} offen")
I(f"buffer_load_dword v{GX+4}, v2, s[{SRD_X}:{SRD_X+3}], s{S_X} offen offset:16")
I(f"buffer_load_dwordx4 {q4(GW)}, v2, s[{SRD_K}:{SRD_K+3}], 0 offen")
I(f"buffer_load_dword v{GW+4}, v2, s[{SRD_K}:{SRD_K+3}], 0 offen offset:16")
WR = 88
for half in range(2):
    I("s_waitcnt lgkmcnt(0)")
    for hh in range(4):
        m0, l0, m1, l1 = (8 + 4 * hh + k for k in range(4))
        a, b_ = WR + 8 * half + 2 * hh, WR + 8 * half + 2 * hh + 1
        I(f"v_mov_b32 v{a}, s{m0}")
        I(f"v_mov_b32 v{b_}, s{m1}")
        I(f"v_max_f32 v3, v{a}, v{b_}")
        I(f"v_sub_f32 v{a}, v{a}, v3")
        I(f"v_sub_f32 v{b_}, v{b_}, v3")
        I(f"v_mul_f32 v{a}, s{S_LOG2E}, v{a}")
        I(f"v_mul_f32 v{b_}, s{S_LOG2E}, v{b_}")
        I(f"v_exp_f32 v{a}, v{a}")
        I(f"v_exp_f32 v{b_}, v{b_}")
        I(f"v_mul_f32 v3, s{l0}, v{a}")
        I(f"v_fma_f32 v3, v{b_}, s{l1}, v3")
        I(f"v_rcp_f32 v3, v3")
        I(f"v_mul_f32 v{a}, v{a}, v3")
        I(f"v_mul_f32 v{b_}, v{b_}, v3")
    if half == 0:
        I(f"s_load_dwordx16 s[8:23], s[4:5], {ML_OFF+64}")
I("s_waitcnt vmcnt(11)")
I(f"v_mul_f32 v4, v{WR}, v{YR}")
for r in range(1, 16):
    I(f"v_fmac_f32 v4, v{WR+r}, v{YR+r}")
I("s_waitcnt vmcnt(4)")
I(f"v_add_f32 v5, v{FR}, v{FR+1}")
for n in range(2, 7):
    I(f"v_add_f32 v5, v5, v{FR+n}")
I(f"v_lshlrev_b32 v6, 3, v0")
I(f"ds_write_b64 v6, v[4:5]")
I("s_waitcnt vmcnt(0) lgkmcnt(0)")
I("s_barrier")
I(f"s_cmp_lg_u32 s{S_W}, 0")
I("s_cbranch_scc1 L_endB")
for w in range(1, 4):
    I(f"ds_read_b64 v[{6+2*w}:{7+2*w}], v6 offset:{w*512}")
I("v_mov_b32 v20, 0")
for j in range(5):
    I(f"v_lshlrev_b32 v21, 16, v{GX+j}")
    I(f"v_and_b32 v22, s{S_HI}, v{GX+j}")
    I(f"v_lshlrev_b32 v23, 16, v{GW+j}")
    I(f"v_and_b32 v24, s{S_HI}, v{GW+j}")
    I(f"v_mul_f32 v21, v21, v23")
    I(f"v_mul_f32 v22, v22, v24")
    I(f"v_cvt_pk_bf16_f32 v21, v21, v22")
    I(f"v_lshlrev_b32 v22, 16, v21")
    I(f"v_and_b32 v21, s{S_HI}, v21")
    I(f"v_add_f32 v20, v20, v22")
    I(f"v_add_f32 v20, v20, v21")
I("v_add_f32_dpp v20, v20, v20 quad_perm:[1,0,3,2] row_mask:0xf bank_mask:0xf")
I("v_add_f32_dpp v20, v20, v20 quad_perm:[2,3,0,1] row_mask:0xf bank_mask:0xf")
wave_allreduce("v_add_f32", 20, 21)


def rnd(v):
    I(f"v_cvt_pk_bf16_f32 v{v}, v{v}, v{v}")
    I(f"v_and_b32 v{v}, s{S_HI}, v{v}")


rnd(20)
I(f"v_mul_f32 v20, s{S_LOG2E}, v20")
I("v_exp_f32 v20, -v20")
I("v_add_f32 v20, 1.0, v20")
I("v_rcp_f32 v20, v20")
rnd(20)
I("v_sub_f32 v21, 1.0, v20")
rnd(21)
I("s_waitcnt lgkmcnt(0)")
I("v_add_f32 v4, v4, v8")
I("v_add_f32 v5, v5, v9")
I("v_add_f32 v10, v10, v12")
I("v_add_f32 v11, v11, v13")
I("v_add_f32 v4, v4, v10")
I("v_add_f32 v5, v5, v11")
rnd(4)
rnd(5)
I("v_mul_f32 v4, v20, v4")
I("v_mul_f32 v5, v21, v5")
rnd(4)
rnd(5)
I("v_add_f32 v4, v4, v5")
I("v_cvt_pk_bf16_f32 v4, v4, v4")
I(f"v_lshlrev_b32 v6, 1, v{V_LANE}")
I(f"s_lshl_b32 s{S_T3}, s{S_T1}, 7")
I(f"s_add_u32 s{S_X}, s{S_X}, s{S_T3}")
I(f"buffer_store_short v4, v6, s[{SRD_V}:{SRD_V+3}], s{S_X} offen")
e.raw("L_endB:")
I("s_endpgm")

e.raw('.section .rodata,"a"')
for name, nv in ((KA, 256), (KB, 104)):
    e.raw(".p2align 6")
    e.raw(f".amdhsa_kernel {name}")
    e.raw(f"  .amdhsa_next_free_vgpr {nv}")
    e.raw("  .amdhsa_next_free_sgpr 96")
    e.raw(f"  .amdhsa_accum_offset {nv}")
    e.raw("  .amdhsa_group_segment_fixed_size 0")
    e.raw("  .amdhsa_kernarg_size 104")
    e.raw("  .amdhsa_user_sgpr_count 2")
    e.raw("  .amdhsa_user_sgpr_kernarg_segment_ptr 1")
    e.raw("  .amdhsa_system_sgpr_workgroup_id_x 1")
    e.raw("  .amdhsa_float_denorm_mode_32 3")
    e.raw(".end_amdhsa_kernel")
sys.stdout.write(e.text())
sys.stderr.write(f"nops: {e.nops}\n")
```

```python
import sys
from em import Em

P = dict(D=12, D1=16, PARK=36, WNT="nt", KVNT="nt", FNT="nt", STAMP=0,
         T_GU=10, T_GUC=13, T_SIG=16, T_CNT=23, T_PART=25, T_H=27, T_ZC=31,
         WOSTART=1, WORATE=2, SLEEP=1, NOCONS=0)
for a in sys.argv[1:]:
    k, v = a.split("=")
    P[k] = v if not v.lstrip("-").isdigit() else int(v)

KN = "gated_mix__mha_block_cached__glu_gated_bilinear__decode"
KA = KN + "_kernel"
LOG2E = "0x3fb8aa3b"
SCALE = "0x3db504f3"
WSO = 0x300000 if P["STAMP"] else 0
ML_OFF = WSO
Y_OFF = WSO + 0x1000
Z_OFF = WSO + 0xB0000
FP_OFF = WSO + 0x160000
WS_BYTES = WSO + 0x280000
SC1 = " sc1"
L_QP, L_OP, L_ML, L_CNT, L_YP, L_ZP, L_S1 = 0, 2048, 4096, 4160, 4608, 14848, 25088
LDS_BYTES = 25088 + 4 * 2048


def fl(x):
    return "" if x in ("0", 0, "") else " " + str(x).replace("+", " ")


e = Em()
I = e.I

S_W = 3
SRD_K, SRD_V, SRD_WQ, SRD_WO, SRD_X, SRD_WS, SRD_GU, SRD_D, SRD_DBG = 44, 48, 52, 56, 60, 64, 4, 8, 12
SRD_D2 = 24
S_K, S_V, S_WQ, S_WO, S_X, S_REC, S_T0, S_T1, S_T2, S_T3 = 68, 69, 70, 71, 72, 73, 74, 75, 76, 77
S_LOG2E, S_SCALE, S_HI = 78, 79, 80
S_B = 81
S_SAVE = 82
S_ST = 84
S_GU, S_D0, S_D1, S_FPW, S_FPR, S_SPIN = 92, 93, 94, 95, 96, 97
S_M2 = 98

V_KV, V_WQ, V_WO = 1, 2, 3
V_MASK = 4
V_Q = 8
V_B0, V_B1 = 12, 16
V_ACC = 20
V_M, V_L, V_NM = 24, 25, 26
V_X = 27
V_C = 30
V_Z01, V_Z23, V_W, V_R1, V_R2, V_P = 34, 35, 36, 37, 38, 39
V_LANE, V_T0, V_SIG, V_RHO, V_T1, V_T2, V_T3, V_LDSW = 40, 41, 42, 43, 44, 45, 46, 47
V_SC = 48
V_XF = 80
V_GUO, V_UU, V_CC, V_Y0 = 84, 85, 86, 87
POOL0 = 88


def srd(base, plo, nbytes):
    I(f"s_mov_b32 s{base}, s{plo}")
    I(f"s_mov_b32 s{base+1}, s{plo+1}")
    I(f"s_mov_b32 s{base+2}, {nbytes}")
    I(f"s_mov_b32 s{base+3}, 0x00020000")


def q4(b):
    return f"v[{b}:{b+3}]"


def sq(b):
    return f"s[{b}:{b+3}]"


class Sched:
    def __init__(self, free):
        self.free = list(free)
        self.count = 0
        self.done = 0
        self.idx = {}
        self.slot = {}

    def note(self, key=None):
        if key is not None:
            self.idx[key] = self.count
        self.count += 1

    def inflight(self):
        return self.count - self.done

    def take(self, key, pref=None):
        src = pref if pref else self.free
        s = src.pop(0)
        self.slot[key] = s
        self.idx[key] = self.count
        self.count += 1
        return s

    def wait(self, keys):
        need = max(self.idx[k] for k in keys) + 1
        if need > self.done:
            n = self.count - need
            assert n <= 63
            I(f"s_waitcnt vmcnt({n})")
            self.done = need

    def release(self, key, to=None):
        (to if to is not None else self.free).append(self.slot.pop(key))

    def tmp(self):
        return self.free.pop()


def bbuild(B, src, bc):
    for i in range(4):
        I(f"v_and_b32_dpp v{B+i}, v{src}, v{V_MASK+i} row_newbcast:{bc} row_mask:0xf bank_mask:0xf")


def xrow_reduce(op, v, tmp):
    I(f"v_mov_b32 v{tmp}, v{v}")
    I(f"v_permlane16_swap_b32 v{v}, v{tmp}")
    I(f"{op} v{v}, v{v}, v{tmp}")
    I(f"v_mov_b32 v{tmp}, v{v}")
    I(f"v_permlane32_swap_b32 v{v}, v{tmp}")
    I(f"{op} v{v}, v{v}, v{tmp}")


def wave_allreduce(op, v, tmp):
    I(f"{op}_dpp v{v}, v{v}, v{v} row_ror:4 row_mask:0xf bank_mask:0xf")
    I(f"{op}_dpp v{v}, v{v}, v{v} row_ror:8 row_mask:0xf bank_mask:0xf")
    xrow_reduce(op, v, tmp)


def rnd(v):
    I(f"v_cvt_pk_bf16_f32 v{v}, v{v}, v{v}")
    I(f"v_and_b32 v{v}, s{S_HI}, v{v}")


def stamp(i):
    if P["STAMP"]:
        I(f"s_memrealtime s[{S_ST+2*i}:{S_ST+2*i+1}]")


def stamp_store():
    if not P["STAMP"]:
        return
    I("s_mov_b64 exec, -1")
    I("s_waitcnt lgkmcnt(0)")
    I(f"s_getreg_b32 s{S_T0}, hwreg(HW_REG_HW_ID)")
    I(f"s_getreg_b32 s{S_T1}, hwreg(HW_REG_XCC_ID)")
    I(f"s_mul_i32 s{S_T2}, s2, 128")
    I(f"s_lshl_b32 s{S_T3}, s{S_W}, 5")
    I(f"s_add_u32 s{S_T2}, s{S_T2}, s{S_T3}")
    for j, s in enumerate([S_ST, S_ST + 1, S_ST + 6, S_ST + 7, S_T0, S_T1, S_ST + 2, S_ST + 4]):
        I(f"v_mov_b32 v{100+j}, s{s}")
    I("v_mov_b32 v108, 0")
    I(f"v_cmp_eq_u32 vcc, 0, v{V_LANE}")
    I(f"s_and_saveexec_b64 s[{S_SAVE}:{S_SAVE+1}], vcc")
    I(f"buffer_store_dwordx4 v[100:103], v108, {sq(SRD_WS)}, s{S_T2} offen")
    I(f"buffer_store_dwordx4 v[104:107], v108, {sq(SRD_WS)}, s{S_T2} offen offset:16")


for h in (f"; @launch grid=(256,1,1) block=(256,1,1) lds={LDS_BYTES}",
          '.amdgcn_target "amdgcn-amd-amdhsa--gfx950"', ".text", f".globl {KA}", ".p2align 8",
          f".type {KA},@function", f"{KA}:"):
    e.raw(h)

I("s_cmp_ge_u32 s2, 256")
I("s_cbranch_scc1 L_end")
stamp(0)
I("s_load_dwordx16 s[16:31], s[0:1], 0")
I("s_load_dwordx8 s[32:39], s[0:1], 64")
I("s_load_dwordx2 s[40:41], s[0:1], 96")
I(f"v_and_b32 v{V_LANE}, 63, v0")
I(f"v_lshrrev_b32 v{V_T0}, 6, v0")
I(f"v_readfirstlane_b32 s{S_W}, v{V_T0}")
I(f"v_lshrrev_b32 v{V_SIG}, 4, v{V_LANE}")
I(f"v_and_b32 v{V_RHO}, 15, v{V_LANE}")
I(f"v_lshlrev_b32 v{V_KV}, 4, v{V_LANE}")
I(f"v_lshlrev_b32 v{V_WQ}, 13, v{V_SIG}")
I(f"v_lshl_add_u32 v{V_WQ}, v{V_RHO}, 4, v{V_WQ}")
I(f"s_and_b32 s{S_T0}, s2, 7")
I(f"s_lshr_b32 s{S_T1}, s2, 3")
I(f"s_and_b32 s{S_T2}, s{S_T1}, 3")
I(f"s_lshl_b32 s{S_T0}, s{S_T0}, 2")
I(f"s_add_u32 s{S_T0}, s{S_T0}, s{S_T2}")
I(f"s_lshr_b32 s{S_T1}, s{S_T1}, 2")
I(f"s_lshr_b32 s{S_B}, s{S_T1}, 1")
I(f"s_and_b32 s{S_T1}, s{S_T1}, 1")
I(f"s_lshl_b32 s{S_REC}, s{S_B}, 5")
I(f"s_add_u32 s{S_REC}, s{S_REC}, s{S_T0}")
I(f"s_lshl_b32 s{S_REC}, s{S_REC}, 1")
I(f"s_add_u32 s{S_REC}, s{S_REC}, s{S_T1}")
I(f"s_mul_i32 s{S_X}, s{S_B}, 1280")
I(f"s_mul_i32 s{S_T3}, s{S_W}, 320")
I(f"s_add_u32 s{S_X}, s{S_X}, s{S_T3}")
I(f"v_lshl_add_u32 v{V_T0}, v{V_RHO}, 2, v{V_SIG}")
I(f"v_lshlrev_b32 v{V_T0}, 1, v{V_T0}")
I(f"v_add_u32 v{V_T0}, s{S_X}, v{V_T0}")
I(f"s_lshl_b32 s{S_WQ}, s{S_T0}, 8")
I(f"s_mul_i32 s{S_T3}, s{S_W}, {160*8192}")
I(f"s_add_u32 s{S_WQ}, s{S_WQ}, s{S_T3}")
I(f"s_lshl_b32 s{S_K}, s{S_REC}, 19")
I(f"s_lshl_b32 s{S_T3}, s{S_W}, 12")
I(f"s_add_u32 s{S_K}, s{S_K}, s{S_T3}")
I(f"s_mov_b32 s{S_V}, s{S_K}")
I(f"s_lshl_b32 s{S_WO}, s{S_T0}, 7")
I(f"s_lshl_b32 s{S_T3}, s{S_W}, 5")
I(f"s_add_u32 s{S_WO}, s{S_WO}, s{S_T3}")
I(f"s_mul_i32 s{S_WO}, s{S_WO}, 1280")
I("s_waitcnt lgkmcnt(0)")
srd(SRD_X, 16, 5120)
srd(SRD_WQ, 22, 5242880)
sc = Sched([POOL0 + 4 * i for i in range((256 - POOL0) // 4)])
for T in range(3):
    I(f"buffer_load_ushort v{V_X+T}, v{V_T0}, {sq(SRD_X)}, 0 offen offset:{T*128}")
    sc.note(("x", T))
srd(SRD_K, 18, 0x8000000)

score_slots = [V_SC + 4 * i for i in range(8)]


def issue(key, pref=None):
    kind = key[0]
    s = sc.take(key, pref)
    if kind == "wq":
        I(f"buffer_load_dwordx4 {q4(s)}, v{V_WQ}, {sq(SRD_WQ)}, s{S_WQ} offen{fl(P['WNT'])}")
        if key[1] < 39:
            I(f"s_add_u32 s{S_WQ}, s{S_WQ}, 32768")
    elif kind in ("k", "v"):
        srdn, sreg = (SRD_K, S_K) if kind == "k" else (SRD_V, S_V)
        t = key[1] & 3
        I(f"buffer_load_dwordx4 {q4(s)}, v{V_KV}, {sq(srdn)}, s{sreg} offen offset:{t*1024}{fl(P['KVNT'])}")
        if t == 3 and key[1] < 127:
            I(f"s_add_u32 s{sreg}, s{sreg}, 16384")
    elif kind == "wo":
        i, c = key[1], key[2]
        I(f"buffer_load_dwordx4 {q4(s)}, v{V_WO}, {sq(SRD_WO)}, s{S_WO} offen offset:{c*256}{fl(P['WNT'])}")
        if c == 4 and i < 7:
            I(f"s_add_u32 s{S_WO}, s{S_WO}, 5120")
    elif kind == "gu":
        I(f"buffer_load_dwordx4 {q4(s)}, v{V_GUO}, {sq(SRD_GU)}, s{S_GU} offen{fl(P['FNT'])}")
        if key[1] < 4:
            I(f"s_add_u32 s{S_GU}, s{S_GU}, {8*3456}")
    elif kind == "d":
        x, c = key[1], key[2]
        I(f"buffer_load_dwordx4 {q4(s)}, v{V_T1 if x else V_WO}, {sq(SRD_D)}, s{S_D0+x} offen offset:{c*256}{fl(P['FNT'])}")


main = []
nk = 0
for g in range(10):
    main += [("wq", 4 * g + t) for t in range(4)]
    if nk < P["PARK"]:
        main += [("k", nk + t) for t in range(4)]
        nk += 4
main += [("k", n) for n in range(nk, 128)]
main += [("v", n) for n in range(128)]
side = [("wo", i, c) for i in range(8) for c in range(5)]
mp = 0
state = dict(D=P["D1"], side_due=0, reserve=0)


def main_held():
    return sum(1 for k in sc.slot if k[0] in ("k", "v"))


def main_inflight():
    return sum(1 for k in main[:mp] if sc.idx[k] >= sc.done)


def fill(maxn=99):
    global mp
    n = 0
    while mp < len(main) and main_inflight() < state["D"] and n < maxn:
        key = main[mp]
        if key[0] == "wq" and score_slots:
            issue(key, score_slots)
        elif len(sc.free) > state["reserve"]:
            issue(key)
        else:
            break
        mp += 1
        n += 1
    while side and state["side_due"] > 0 and n < maxn:
        rem = len(main) - mp
        if len(sc.free) > state["reserve"] + max(0, min(rem, state["D"]) - main_held()):
            issue(side.pop(0))
            state["side_due"] -= 1
            n += 1
        else:
            break
    return n


fill()
srd(SRD_V, 20, 0x8000000)
srd(SRD_WO, 24, 5242880)
srd(SRD_WS, 40, WS_BYTES)
srd(SRD_D, 32, 2211840)
srd(SRD_DBG, 38, 256)
I(f"v_mul_u32_u24 v{V_WO}, 1280, v{V_SIG}")
I(f"v_lshl_add_u32 v{V_WO}, v{V_RHO}, 4, v{V_WO}")
I(f"v_and_b32 v{V_CC}, 7, v{V_LANE}")
I(f"v_lshrrev_b32 v{V_T2}, 1, v{V_CC}")
I(f"v_and_b32 v{V_T3}, 1, v{V_LANE}")
I(f"v_lshlrev_b32 v{V_T3}, 4, v{V_T3}")
I(f"v_mov_b32 v{V_T0}, 0xffff")
I(f"v_lshlrev_b32 v{V_T3}, v{V_T3}, v{V_T0}")
for i in range(4):
    I(f"v_cmp_eq_u32 vcc, {i}, v{V_T2}")
    I(f"v_cndmask_b32 v{V_MASK+i}, 0, v{V_T3}, vcc")
I(f"v_lshl_add_u32 v{V_LDSW}, v{V_SIG}, 5, v{V_CC}")
I(f"v_lshlrev_b32 v{V_LDSW}, 2, v{V_LDSW}")
I(f"s_mov_b32 s{S_LOG2E}, {LOG2E}")
I(f"s_mov_b32 s{S_SCALE}, {SCALE}")
I(f"s_mov_b32 s{S_HI}, 0xffff0000")
I(f"s_mul_i32 s{S_T0}, s2, 1214")
I(f"s_lshr_b32 s{S_T0}, s{S_T0}, 15")
I(f"s_mul_i32 s{S_T1}, s{S_T0}, 27")
I(f"s_sub_u32 s{S_T1}, s2, s{S_T1}")
I(f"s_and_b32 s{S_T2}, s{S_W}, 1")
I(f"s_lshr_b32 s{S_T3}, s{S_W}, 1")
I(f"s_cmp_eq_u32 s{S_T2}, 0")
I(f"s_cselect_b32 s{SRD_GU}, s28, s30")
I(f"s_cselect_b32 s{SRD_GU+1}, s29, s31")
I(f"s_mov_b32 s{SRD_GU+2}, 2211840")
I(f"s_mov_b32 s{SRD_GU+3}, 0x00020000")
I(f"s_lshl_b32 s{S_FPW}, s{S_T0}, 1")
I(f"s_add_u32 s{S_FPW}, s{S_FPW}, s{S_T3}")
I(f"s_mul_i32 s{S_GU}, s{S_FPW}, {40*3456}")
I(f"s_lshl_b32 s{S_T3}, s{S_T1}, 7")
I(f"s_add_u32 s{S_GU}, s{S_GU}, s{S_T3}")
I(f"s_mul_i32 s{S_X}, s{S_FPW}, 80")
I(f"s_lshl_b32 s{S_FPW}, s{S_FPW}, 1")
I(f"s_add_u32 s{S_FPW}, s{S_FPW}, s{S_T2}")
I(f"s_mul_i32 s{S_FPW}, s{S_FPW}, {4*6912}")
I(f"s_lshl_b32 s{S_T3}, s{S_T1}, 8")
I(f"s_add_u32 s{S_FPW}, s{S_FPW}, s{S_T3}")
I(f"s_add_u32 s{S_FPW}, s{S_FPW}, {FP_OFF}")
I(f"v_lshrrev_b32 v{V_UU}, 3, v{V_RHO}")
I(f"v_lshl_add_u32 v{V_T0}, v{V_UU}, 2, v{V_SIG}")
I(f"v_mul_u32_u24 v{V_GUO}, 3456, v{V_T0}")
I(f"v_lshl_add_u32 v{V_GUO}, v{V_CC}, 4, v{V_GUO}")
I("s_cmp_lt_u32 s2, 216")
I(f"s_cselect_b32 s{S_GU}, s{S_GU}, 0")
I(f"s_cselect_b32 s{S_T3}, 0, 0x40000000")
I(f"v_or_b32 v{V_GUO}, s{S_T3}, v{V_GUO}")
I(f"v_lshl_add_u32 v{V_T1}, v{V_CC}, 3, v{V_T0}")
I(f"v_lshlrev_b32 v{V_T1}, 1, v{V_T1}")
I(f"v_add_u32 v{V_T1}, s{S_X}, v{V_T1}")
for b in range(4):
    I(f"buffer_load_ushort v{V_XF+b}, v{V_T1}, {sq(SRD_X)}, 0 offen offset:{b*1280}")
    sc.note(("xf", b))
I(f"s_and_b32 s{S_T0}, s{S_REC}, 63")
I(f"s_mul_i32 s{S_T0}, s{S_T0}, 27")
I(f"s_lshl_b32 s{S_T1}, s{S_W}, 2")
I(f"s_add_u32 s{S_T0}, s{S_T0}, s{S_T1}")
I(f"s_mul_i32 s{S_D0}, s{S_T0}, 1280")
I(f"s_add_u32 s{S_D1}, s{S_D0}, {16*1280}")
I(f"s_cmp_eq_u32 s{S_W}, 3")
I(f"s_cselect_b32 s{S_D1}, 0, s{S_D1}")
I(f"s_mul_i32 s{S_FPR}, s{S_B}, 6912")
I(f"s_lshl_b32 s{S_T0}, s{S_T0}, 2")
I(f"s_add_u32 s{S_FPR}, s{S_FPR}, s{S_T0}")
I(f"s_add_u32 s{S_FPR}, s{S_FPR}, {FP_OFF}")
I(f"s_mul_i32 s{S_T2}, s{S_REC}, 2560")
I(f"s_mul_i32 s{S_T3}, s{S_W}, 640")
I(f"s_add_u32 s{S_T2}, s{S_T2}, s{S_T3}")
I(f"s_add_u32 s{S_T3}, s{S_T2}, {Z_OFF}")
I(f"s_add_u32 s{S_T2}, s{S_T2}, {Y_OFF}")
for j in range(4):
    I(f"v_mov_b32 v{V_C+j}, -1")
I(f"v_mov_b32 v{V_T3}, 0")
I(f"v_cmp_gt_u32 vcc, 40, v{V_LANE}")
I(f"s_and_saveexec_b64 s[{S_SAVE}:{S_SAVE+1}], vcc")
I(f"buffer_store_dwordx4 v[{V_C}:{V_C+3}], v{V_KV}, {sq(SRD_WS)}, s{S_T2} offen{SC1}")
sc.note()
I(f"buffer_store_dwordx4 v[{V_C}:{V_C+3}], v{V_KV}, {sq(SRD_WS)}, s{S_T3} offen{SC1}")
sc.note()
I(f"s_mov_b64 exec, s[{S_SAVE}:{S_SAVE+1}]")
I(f"s_lshl_b32 s{S_T2}, s{S_REC}, 3")
I(f"s_add_u32 s{S_T2}, s{S_T2}, {ML_OFF}")
I(f"v_cmp_eq_u32 vcc, 0, v{V_LANE}")
I(f"s_and_saveexec_b64 s[{S_SAVE}:{S_SAVE+1}], vcc")
I(f"buffer_store_dwordx2 v[{V_C}:{V_C+1}], v{V_T3}, {sq(SRD_WS)}, s{S_T2} offen{SC1}")
sc.note()
I(f"ds_write_b32 v{V_T3}, v{V_T3} offset:{L_CNT}")
I(f"s_mov_b64 exec, s[{S_SAVE}:{S_SAVE+1}]")

sc.wait([("x", 2)])
for T in range(3):
    I(f"v_lshl_or_b32 v{V_X+T}, v{V_X+T}, 16, v{V_X+T}")


def pv_like(keys, coef, acc, first, release_to=None):
    sc.wait(keys)
    Bs = [V_B0, V_B1]
    n = len(keys)
    bbuild(Bs[0], *coef(0))
    if n > 1:
        bbuild(Bs[1], *coef(1))
    for t in range(n):
        a = acc(t)
        c = "0" if (first and first(t)) else q4(a)
        I(f"v_mfma_f32_16x16x32_bf16 {q4(a)}, {q4(sc.slot[keys[t]])}, {q4(Bs[t&1])}, {c}")
        k = keys[t]
        to = release_to(k) if release_to else None
        sc.release(k, to)
        if t + 2 < n:
            bbuild(Bs[t & 1], *coef(t + 2))
        else:
            fill(2)
    fill()


def wq_rel(k):
    return score_slots if V_SC <= sc.slot[k] < V_SC + 32 else None


for g in range(10):
    keys = [("wq", 4 * g + t) for t in range(4)]
    pv_like(keys, lambda t: (V_X + (4 * g + t) // 16, (4 * g + t) % 16), lambda t: V_ACC,
            lambda t: g == 0 and t == 0, wq_rel)
score_slots.clear()
state["D"] = P["D"]
I(f"s_lshl_b32 s{S_T3}, s{S_W}, 9")
I(f"v_add_u32 v{V_T0}, s{S_T3}, v{V_LDSW}")
for r in range(4):
    I(f"ds_write_b32 v{V_T0}, v{V_ACC+r} offset:{L_QP+r*32}")
I(f"v_lshlrev_b32 v{V_T1}, 5, v{V_RHO}")
I("s_waitcnt lgkmcnt(0)")
I("s_barrier")
for w in range(4):
    I(f"ds_read_b128 {q4(V_SC+8*w)}, v{V_T1} offset:{L_QP+w*512}")
    I(f"ds_read_b128 {q4(V_SC+8*w+4)}, v{V_T1} offset:{L_QP+w*512+16}")
I("s_waitcnt lgkmcnt(4)")
for j in range(8):
    I(f"v_add_f32 v{V_SC+j}, v{V_SC+j}, v{V_SC+8+j}")
I("s_waitcnt lgkmcnt(0)")
for j in range(8):
    I(f"v_add_f32 v{V_SC+16+j}, v{V_SC+16+j}, v{V_SC+24+j}")
for j in range(8):
    I(f"v_add_f32 v{V_SC+j}, v{V_SC+j}, v{V_SC+16+j}")
for j in range(4):
    I(f"v_cvt_pk_bf16_f32 v{V_Q+j}, v{V_SC+2*j}, v{V_SC+2*j+1}")
I(f"v_mov_b32 v{V_M}, 0xff7fffff")
I(f"v_mov_b32 v{V_L}, 0")
stamp(1)

BANK_OF_T = [0, 2, 1, 3]


def post_score(T):
    I(f"v_cvt_pk_bf16_f32 v{V_R1}, v{V_SC+T}, v{V_SC+T}")
    I(f"v_and_b32 v{V_R1}, s{S_HI}, v{V_R1}")
    I(f"v_mul_f32 v{V_R1}, s{S_SCALE}, v{V_R1}")
    I(f"v_cvt_pk_bf16_f32 v{V_R1}, v{V_R1}, v{V_R1}")
    I(f"v_and_b32 v{V_SC+T}, s{S_HI}, v{V_R1}")
    I(f"v_max_f32 v{V_M}, v{V_M}, v{V_SC+T}")


def hook_gu_issue():
    for i in range(5):
        assert sc.free
        issue(("gu", i))
    state["reserve"] = 4


def hook_gu_consume():
    state["reserve"] = 0
    acc = [sc.tmp() for _ in range(4)]
    sc.wait([("gu", 4), ("xf", 3)])
    for b in range(4):
        I(f"v_lshl_or_b32 v{V_XF+b}, v{V_XF+b}, 16, v{V_XF+b}")
    n = 0
    for i in range(5):
        for b in range(4):
            B = [V_B0, V_B1][n & 1]
            y = [V_Y0, V_T0][n & 1]
            n += 1
            I(f"v_mov_b32_dpp v{y}, v{V_XF+b} row_newbcast:{i} row_mask:0xf bank_mask:0x3")
            I(f"v_mov_b32_dpp v{y}, v{V_XF+b} row_newbcast:{8+i} row_mask:0xf bank_mask:0xc")
            for k in range(4):
                I(f"v_and_b32 v{B+k}, v{y}, v{V_MASK+k}")
            cc = "0" if i == 0 else q4(acc[b])
            I(f"v_mfma_f32_16x16x32_bf16 {q4(acc[b])}, {q4(sc.slot[('gu', i)])}, {q4(B)}, {cc}")
        sc.release(("gu", i))
    fill()
    I(f"v_lshrrev_b32 v{V_T0}, 1, v{V_SIG}")
    I(f"v_and_b32 v{V_T1}, 1, v{V_SIG}")
    I(f"v_lshl_add_u32 v{V_T1}, v{V_T1}, 5, v{V_CC}")
    I(f"v_lshlrev_b32 v{V_T1}, 2, v{V_T1}")
    I(f"v_lshl_add_u32 v{V_T1}, v{V_T0}, 10, v{V_T1}")
    I(f"s_lshl_b32 s{S_T3}, s{S_W}, 11")
    I(f"v_add_u32 v{V_T1}, s{S_T3}, v{V_T1}")
    I(f"v_add_u32 v{V_T2}, s{S_T3}, v{V_KV}")
    I(f"v_cmp_eq_u32 vcc, v{V_T0}, v{V_UU}")
    I(f"s_and_saveexec_b64 s[{S_SAVE}:{S_SAVE+1}], vcc")
    for b in range(4):
        for r in range(4):
            I(f"ds_write_b32 v{V_T1}, v{acc[b]+r} offset:{L_S1+b*256+r*32}")
    I(f"s_mov_b64 exec, s[{S_SAVE}:{S_SAVE+1}]")
    I(f"v_mul_u32_u24 v{V_T0}, 6912, v{V_SIG}")
    I(f"v_lshl_add_u32 v{V_T0}, v{V_RHO}, 4, v{V_T0}")
    I("s_waitcnt lgkmcnt(0)")
    I(f"ds_read_b128 {q4(acc[0])}, v{V_T2} offset:{L_S1}")
    I(f"ds_read_b128 {q4(acc[1])}, v{V_T2} offset:{L_S1+1024}")
    I("s_waitcnt lgkmcnt(0)")
    for j in range(4):
        I(f"v_add_f32 v{acc[0]+j}, v{acc[0]+j}, v{acc[1]+j}")
    I(f"buffer_store_dwordx4 {q4(acc[0])}, v{V_T0}, {sq(SRD_WS)}, s{S_FPW} offen{SC1}")
    sc.note(("fpst",))
    e.nop(2)
    for a in acc:
        sc.free.append(a)


def hook_signal():
    sc.wait([("fpst",)])
    I(f"v_mov_b32 v{V_T0}, 0")
    I(f"v_mov_b32 v{V_T1}, 1")
    I(f"v_cmp_eq_u32 vcc, 0, v{V_LANE}")
    I(f"s_and_saveexec_b64 s[{S_SAVE}:{S_SAVE+1}], vcc")
    I(f"ds_add_rtn_u32 v{V_T2}, v{V_T0}, v{V_T1} offset:{L_CNT}")
    I(f"s_and_b32 s{S_T3}, s2, 7")
    I(f"s_lshl_b32 s{S_T3}, s{S_T3}, 5")
    I("s_waitcnt lgkmcnt(0)")
    I(f"v_cmp_ne_u32 vcc, 3, v{V_T2}")
    I(f"v_mov_b32 v{V_T2}, 0x1000")
    I(f"v_cndmask_b32 v{V_T0}, v{V_T0}, v{V_T2}, vcc")
    I(f"buffer_atomic_add v{V_T1}, v{V_T0}, {sq(SRD_DBG)}, s{S_T3} offen{SC1}")
    sc.note()
    I(f"s_mov_b64 exec, s[{S_SAVE}:{S_SAVE+1}]")


def cnt_load():
    I(f"v_lshlrev_b32 v{V_T0}, 5, v{V_CC}")
    I(f"buffer_load_dword v{V_Y0}, v{V_T0}, {sq(SRD_DBG)}, 0 offen{SC1}")


def hook_cnt():
    cnt_load()
    sc.note(("cnt",))


def hook_part():
    sc.wait([("cnt",)])
    I(f"v_cmp_ne_u32 vcc, 32, v{V_Y0}")
    I("s_cbranch_vccz L_cnt_ok")
    I(f"s_mov_b32 s{S_SPIN}, 0")
    e.label("L_cnt_spin")
    I("s_sleep 8")
    cnt_load()
    I(f"s_add_u32 s{S_SPIN}, s{S_SPIN}, 1")
    I(f"s_cmp_gt_u32 s{S_SPIN}, 20000")
    I("s_cbranch_scc1 L_cnt_ok")
    I("s_waitcnt vmcnt(0)")
    I(f"v_cmp_ne_u32 vcc, 32, v{V_Y0}")
    I("s_cbranch_vccnz L_cnt_spin")
    e.label("L_cnt_ok")
    I(f"v_mul_u32_u24 v{V_T0}, {8*6912}, v{V_RHO}")
    I(f"v_lshl_add_u32 v{V_T0}, v{V_SIG}, 2, v{V_T0}")
    I(f"s_add_u32 s{S_T3}, s{S_FPR}, {4*6912}")
    for x in range(2):
        for m in range(2):
            so = S_FPR if m == 0 else S_T3
            I(f"buffer_load_dword v{V_XF+2*x+m}, v{V_T0}, {sq(SRD_WS)}, s{so} offen offset:{x*64}{SC1}")
            sc.note(("part", x, m))


def hook_h():
    I(f"s_lshl_b32 s{S_T3}, s{S_W}, 2")
    I(f"v_add_u32 v{V_T2}, s{S_T3}, v{V_SIG}")
    I(f"v_mov_b32 v{V_T1}, 0x40000000")
    I(f"v_cmp_gt_u32 vcc, 11, v{V_T2}")
    I(f"v_cndmask_b32 v{V_T1}, v{V_T1}, v{V_WO}, vcc")
    for x in range(2):
        for c in range(5):
            assert sc.free
            issue(("d", x, c))
    state["reserve"] = 5
    sc.wait([("part", 1, 1)])
    for ror in (8, 4, 2, 1):
        for r in range(4):
            I(f"v_add_f32_dpp v{V_XF+r}, v{V_XF+r}, v{V_XF+r} row_ror:{ror} row_mask:0xf bank_mask:0xf")
    for x in range(2):
        g_, u_ = V_XF + 2 * x, V_XF + 2 * x + 1
        I(f"v_cvt_pk_bf16_f32 v{V_T0}, v{g_}, v{u_}")
        I(f"v_lshlrev_b32 v{V_T1}, 16, v{V_T0}")
        I(f"v_and_b32 v{V_T0}, s{S_HI}, v{V_T0}")
        I(f"v_mul_f32 v{V_T0}, v{V_T0}, v{V_T1}")
        I(f"v_cvt_pk_bf16_f32 v{g_}, v{V_T0}, v{V_T0}")
    I(f"v_cmp_gt_u32 vcc, 11, v{V_T2}")
    I(f"v_cndmask_b32 v{V_XF+2}, 0, v{V_XF+2}, vcc")


def hook_zc():
    state["reserve"] = 0
    acc = [sc.tmp() for _ in range(5)]
    sc.wait([("d", 1, 4)])
    for x in range(2):
        B = [V_B0, V_B1][x]
        for k in range(4):
            I(f"v_and_b32 v{B+k}, v{V_XF+2*x}, v{V_MASK+k}")
    for x in range(2):
        B = [V_B0, V_B1][x]
        for c in range(5):
            cc = "0" if x == 0 else q4(acc[c])
            I(f"v_mfma_f32_16x16x32_bf16 {q4(acc[c])}, {q4(sc.slot[('d', x, c)])}, {q4(B)}, {cc}")
            sc.release(("d", x, c))
    fill()
    I(f"s_mul_i32 s{S_T3}, s{S_W}, 2560")
    I(f"v_add_u32 v{V_T0}, s{S_T3}, v{V_LDSW}")
    for c in range(5):
        for r in range(4):
            I(f"ds_write_b32 v{V_T0}, v{acc[c]+r} offset:{L_ZP+c*512+r*32}")
    I("s_waitcnt lgkmcnt(0)")
    for a in acc:
        sc.free.append(a)


hooks = {}
for name, fn in (("T_GU", hook_gu_issue), ("T_GUC", hook_gu_consume), ("T_SIG", hook_signal), ("T_CNT", hook_cnt),
                 ("T_PART", hook_part), ("T_H", hook_h), ("T_ZC", hook_zc)):
    hooks.setdefault(P[name], []).append(fn)


def run_hooks(T):
    for fn in hooks.pop(T, []):
        fn()


for T in range(32):
    keys = [("k", 4 * T + t) for t in range(4)]
    sc.wait(keys)
    for j in range(4):
        for t in range(4):
            a = sc.slot[keys[t]] + j
            if j == 0:
                I(f"v_dot2_f32_bf16 v{V_C+t}, v{a}, v{V_Q}, 0")
            else:
                I(f"v_dot2c_f32_bf16 v{V_C+t}, v{a}, v{V_Q+j}")
    for k in keys:
        sc.release(k)
    fill(1)
    I(f"v_add_f32_dpp v{V_Z01}, v{V_C}, v{V_C} row_ror:8 row_mask:0xf bank_mask:0x3")
    I(f"v_add_f32_dpp v{V_Z01}, v{V_C+1}, v{V_C+1} row_ror:8 row_mask:0xf bank_mask:0xc")
    I(f"v_add_f32_dpp v{V_Z23}, v{V_C+2}, v{V_C+2} row_ror:8 row_mask:0xf bank_mask:0x3")
    I(f"v_add_f32_dpp v{V_Z23}, v{V_C+3}, v{V_C+3} row_ror:8 row_mask:0xf bank_mask:0xc")
    fill(1)
    I(f"v_add_f32_dpp v{V_W}, v{V_Z01}, v{V_Z01} row_ror:12 row_mask:0xf bank_mask:0x5")
    I(f"v_add_f32_dpp v{V_W}, v{V_Z23}, v{V_Z23} row_ror:4 row_mask:0xf bank_mask:0xa")
    fill(2)
    if T > 0:
        post_score(T - 1)
    I(f"v_add_f32_dpp v{V_W}, v{V_W}, v{V_W} quad_perm:[2,3,0,1] row_mask:0xf bank_mask:0xf")
    fill()
    I(f"v_add_f32_dpp v{V_SC+T}, v{V_W}, v{V_W} quad_perm:[1,0,3,2] row_mask:0xf bank_mask:0xf")
    run_hooks(T)
post_score(31)
wave_allreduce("v_max_f32", V_M, V_T0)
I(f"v_mul_f32 v{V_NM}, s{S_LOG2E}, v{V_M}")
I(f"v_sub_f32 v{V_NM}, 0, v{V_NM}")
stamp(2)


def make_p(T):
    I(f"v_fma_f32 v{V_P}, v{V_SC+T}, s{S_LOG2E}, v{V_NM}")
    I(f"v_exp_f32 v{V_P}, v{V_P}")
    I(f"v_cvt_pk_bf16_f32 v{V_SC+T}, v{V_P}, v{V_P}")
    I(f"v_add_f32 v{V_L}, v{V_L}, v{V_P}")


make_p(0)
for T in range(32):
    keys = [("v", 4 * T + t) for t in range(4)]
    if T + 1 < 32:
        make_p(T + 1)
    if T >= P["WOSTART"]:
        state["side_due"] += P["WORATE"]
    pv_like(keys, lambda t: (V_SC + T, 4 * BANK_OF_T[t]), lambda t: V_ACC, lambda t: T == 0 and t == 0)
    if T % 4 == 3:
        sc.free.append(V_SC + T - 3)
        fill()
    run_hooks(32 + T)
state["side_due"] = 99
fill()
assert not side and mp == len(main) and not hooks, (side, mp, hooks)
wave_allreduce("v_add_f32", V_L, V_T0)
I(f"s_lshl_b32 s{S_T3}, s{S_W}, 9")
I(f"v_add_u32 v{V_T0}, s{S_T3}, v{V_LDSW}")
for r in range(4):
    I(f"ds_write_b32 v{V_T0}, v{V_ACC+r} offset:{L_OP+r*32}")
I(f"s_lshl_b32 s{S_T3}, s{S_W}, 3")
I(f"v_mov_b32 v{V_T1}, s{S_T3}")
I(f"ds_write_b64 v{V_T1}, v[{V_M}:{V_L}] offset:{L_ML}")
I(f"v_lshl_add_u32 v{V_T2}, v{V_CC}, 2, v{V_SIG}")
I(f"s_lshl_b32 s{S_T3}, s{S_W}, 5")
I(f"v_add_u32 v{V_T2}, s{S_T3}, v{V_T2}")
I(f"v_lshlrev_b32 v{V_T2}, 2, v{V_T2}")
I(f"v_mov_b32 v{V_T3}, 0")
I("s_waitcnt lgkmcnt(0)")
I("s_barrier")
I(f"ds_read_b128 {q4(V_B0)}, v{V_T3} offset:{L_ML}")
I(f"ds_read_b128 {q4(V_B1)}, v{V_T3} offset:{L_ML+16}")
for w in range(4):
    I(f"ds_read_b32 v{V_C+w}, v{V_T2} offset:{L_OP+w*512}")
I("s_waitcnt lgkmcnt(4)")
ms = [V_B0, V_B0 + 2, V_B1, V_B1 + 2]
ls = [V_B0 + 1, V_B0 + 3, V_B1 + 1, V_B1 + 3]
I(f"v_max3_f32 v{V_M}, v{ms[0]}, v{ms[1]}, v{ms[2]}")
I(f"v_max_f32 v{V_M}, v{V_M}, v{ms[3]}")
for w in range(4):
    I(f"v_sub_f32 v{ms[w]}, v{ms[w]}, v{V_M}")
for w in range(4):
    I(f"v_mul_f32 v{ms[w]}, s{S_LOG2E}, v{ms[w]}")
for w in range(4):
    I(f"v_exp_f32 v{ms[w]}, v{ms[w]}")
I(f"v_mul_f32 v{V_L}, v{ms[0]}, v{ls[0]}")
for w in range(1, 4):
    I(f"v_fmac_f32 v{V_L}, v{ms[w]}, v{ls[w]}")
I("s_waitcnt lgkmcnt(0)")
I(f"v_mul_f32 v{V_P}, v{ms[0]}, v{V_C}")
for w in range(1, 4):
    I(f"v_fmac_f32 v{V_P}, v{ms[w]}, v{V_C+w}")
I(f"v_cvt_pk_bf16_f32 v{V_NM}, v{V_P}, v{V_P}")
OACC = [V_Q, V_ACC, 28, 32, 36]
sc.wait([("wo", 7, 4)])
Bs = [V_B0, V_B1]
bbuild(Bs[0], V_NM, 0)
for i in range(8):
    if i + 1 < 8:
        bbuild(Bs[(i + 1) & 1], V_NM, i + 1)
    for c in range(5):
        a = OACC[c]
        cc = "0" if i == 0 else q4(a)
        I(f"v_mfma_f32_16x16x32_bf16 {q4(a)}, {q4(sc.slot[('wo', i, c)])}, {q4(Bs[i&1])}, {cc}")
I(f"s_mul_i32 s{S_T3}, s{S_W}, 2560")
I(f"v_add_u32 v{V_T0}, s{S_T3}, v{V_LDSW}")
I(f"s_mul_i32 s{S_T3}, s{S_W}, 640")
I(f"v_add_u32 v{V_T1}, s{S_T3}, v{V_KV}")
I(f"s_mul_i32 s{S_T2}, s{S_REC}, 2560")
I(f"s_add_u32 s{S_T2}, s{S_T2}, s{S_T3}")
I(f"s_add_u32 s{S_T3}, s{S_T2}, {Z_OFF}")
I(f"s_add_u32 s{S_T2}, s{S_T2}, {Y_OFF}")
I(f"s_lshl_b32 s{S_T1}, s{S_REC}, 3")
I(f"s_add_u32 s{S_T1}, s{S_T1}, {ML_OFF}")
I(f"v_min_u32 v{V_M}, -2, v{V_M}")
I(f"v_min_u32 v{V_L}, -2, v{V_L}")
for c in range(5):
    for r in range(4):
        I(f"ds_write_b32 v{V_T0}, v{OACC[c]+r} offset:{L_YP+c*512+r*32}")
I(f"v_cmp_eq_u32 vcc, 0, v0")
I(f"s_and_saveexec_b64 s[{S_SAVE}:{S_SAVE+1}], vcc")
I("s_cbranch_execz L_skipml")
I(f"buffer_store_dwordx2 v[{V_M}:{V_L}], v{V_T3}, {sq(SRD_WS)}, s{S_T1} offen{SC1}")
e.label("L_skipml")
I(f"v_cmp_gt_u32 vcc, 40, v{V_LANE}")
I(f"s_mov_b64 exec, s[{S_SAVE}:{S_SAVE+1}]")
I("s_waitcnt lgkmcnt(0)")
I("s_barrier")
I(f"v_cmp_gt_u32 vcc, 40, v{V_LANE}")
I(f"s_and_saveexec_b64 s[{S_SAVE}:{S_SAVE+1}], vcc")
R = POOL0
for w in range(4):
    I(f"ds_read_b128 {q4(R+4*w)}, v{V_T1} offset:{L_YP+w*2560}")
for w in range(4):
    I(f"ds_read_b128 {q4(R+16+4*w)}, v{V_T1} offset:{L_ZP+w*2560}")
for part, so in ((0, S_T2), (1, S_T3)):
    Q = R + 16 * part
    I(f"s_waitcnt lgkmcnt({4 if part == 0 else 0})")
    for j in range(4):
        I(f"v_add_f32 v{Q+j}, v{Q+j}, v{Q+4+j}")
        I(f"v_add_f32 v{Q+8+j}, v{Q+8+j}, v{Q+12+j}")
    for j in range(4):
        I(f"v_add_f32 v{Q+j}, v{Q+j}, v{Q+8+j}")
    for j in range(4):
        I(f"v_min_u32 v{Q+j}, -2, v{Q+j}")
    I(f"buffer_store_dwordx4 {q4(Q)}, v{V_KV}, {sq(SRD_WS)}, s{so} offen{SC1}")
I(f"s_mov_b64 exec, s[{S_SAVE}:{S_SAVE+1}]")
I(f"s_and_b32 s{S_T0}, s{S_REC}, 63")
I(f"s_cmp_ge_u32 s{S_T0}, 40")
I("s_cbranch_scc1 L_fin")
I(f"s_cmp_lg_u32 s{S_W}, 0")
I("s_cbranch_scc1 L_fin")
if P["NOCONS"]:
    I("s_branch L_fin")
srd(SRD_K, 34, 1280)
srd(SRD_V, 36, 5120)
GX, GW = 48, 56
I(f"v_mul_u32_u24 v{V_T0}, 20, v{V_LANE}")
I(f"s_mul_i32 s{S_X}, s{S_B}, 1280")
I(f"buffer_load_dwordx4 {q4(GX)}, v{V_T0}, {sq(SRD_X)}, s{S_X} offen")
I(f"buffer_load_dword v{GX+4}, v{V_T0}, {sq(SRD_X)}, s{S_X} offen offset:16")
I(f"buffer_load_dwordx4 {q4(GW)}, v{V_T0}, {sq(SRD_K)}, 0 offen")
I(f"buffer_load_dword v{GW+4}, v{V_T0}, {sq(SRD_K)}, 0 offen offset:16")
VY, VML = 64, 65
I(f"v_lshrrev_b32 v{V_T1}, 2, v{V_LANE}")
I(f"v_and_b32 v{V_T2}, 3, v{V_LANE}")
I(f"v_mul_u32_u24 v{VY}, 2560, v{V_T1}")
I(f"v_lshl_add_u32 v{VY}, v{V_T2}, 4, v{VY}")
I(f"v_lshrrev_b32 v{VML}, 1, v{V_T1}")
I(f"v_lshlrev_b32 v{VML}, 4, v{VML}")
I(f"v_and_b32 v{V_T1}, 1, v{V_T1}")
I(f"v_cmp_eq_u32 s[{S_M2}:{S_M2+1}], 1, v{V_T1}")
I(f"s_lshl_b32 s{S_T1}, s{S_B}, 6")
I(f"s_mul_i32 s{S_K}, s{S_T1}, 2560")
I(f"s_lshl_b32 s{S_T3}, s{S_T0}, 6")
I(f"s_add_u32 s{S_K}, s{S_K}, s{S_T3}")
I(f"s_lshl_b32 s{S_V}, s{S_T1}, 3")
I(f"s_add_u32 s{S_V}, s{S_V}, {ML_OFF}")
YR, ZR, MR = 96, 112, 128
SOY = [16, 17, 18, 19]
SOZ = [20, 21, 22, 23]
for i in range(4):
    I(f"s_add_u32 s{SOY[i]}, s{S_K}, {Y_OFF + i*16*2560}")
    I(f"s_add_u32 s{SOZ[i]}, s{S_K}, {Z_OFF + i*16*2560}")
I(f"s_mov_b32 s{S_SPIN}, 0")
e.label("L_poll")
for i in range(4):
    I(f"buffer_load_dwordx4 {q4(MR+4*i)}, v{VML}, {sq(SRD_WS)}, s{S_V} offen offset:{i*128}{SC1}")
    I(f"buffer_load_dwordx4 {q4(YR+4*i)}, v{VY}, {sq(SRD_WS)}, s{SOY[i]} offen{SC1}")
    I(f"buffer_load_dwordx4 {q4(ZR+4*i)}, v{VY}, {sq(SRD_WS)}, s{SOZ[i]} offen{SC1}")
I(f"s_add_u32 s{S_SPIN}, s{S_SPIN}, 1")
I("s_waitcnt vmcnt(0)")
I(f"v_max3_u32 v{V_T0}, v{YR}, v{YR+1}, v{YR+2}")
for j in range(3, 47, 2):
    I(f"v_max3_u32 v{V_T0}, v{YR+j}, v{YR+j+1}, v{V_T0}")
I(f"v_max_u32 v{V_T0}, v{YR+47}, v{V_T0}")
I(f"s_cmp_gt_u32 s{S_SPIN}, 20000")
I("s_cbranch_scc1 L_poll_done")
I(f"v_cmp_eq_u32 vcc, -1, v{V_T0}")
I("s_cbranch_vccz L_poll_done")
if P["SLEEP"]:
    I(f"s_sleep {P['SLEEP']}")
I("s_branch L_poll")
e.label("L_poll_done")
AY, AZ = 68, 72
for i in range(4):
    m0, l0, m1, l1 = (MR + 4 * i + k for k in range(4))
    I(f"v_max_f32 v{V_T0}, v{m0}, v{m1}")
    I(f"v_sub_f32 v{m0}, v{m0}, v{V_T0}")
    I(f"v_sub_f32 v{m1}, v{m1}, v{V_T0}")
    I(f"v_mul_f32 v{m0}, s{S_LOG2E}, v{m0}")
    I(f"v_mul_f32 v{m1}, s{S_LOG2E}, v{m1}")
    I(f"v_exp_f32 v{m0}, v{m0}")
    I(f"v_exp_f32 v{m1}, v{m1}")
    I(f"v_mul_f32 v{V_T0}, v{m0}, v{l0}")
    I(f"v_fmac_f32 v{V_T0}, v{m1}, v{l1}")
    I(f"v_rcp_f32 v{V_T0}, v{V_T0}")
    I(f"v_cndmask_b32 v{m0}, v{m0}, v{m1}, s[{S_M2}:{S_M2+1}]")
    I(f"v_mul_f32 v{m0}, v{m0}, v{V_T0}")
    for j in range(4):
        if i == 0:
            I(f"v_mul_f32 v{AY+j}, v{m0}, v{YR+j}")
        else:
            I(f"v_fmac_f32 v{AY+j}, v{m0}, v{YR+4*i+j}")
for j in range(4):
    I(f"v_add_f32 v{ZR+j}, v{ZR+j}, v{ZR+4+j}")
    I(f"v_add_f32 v{ZR+8+j}, v{ZR+8+j}, v{ZR+12+j}")
for j in range(4):
    I(f"v_add_f32 v{AZ+j}, v{ZR+j}, v{ZR+8+j}")
for ror in (4, 8):
    for j in range(8):
        I(f"v_add_f32_dpp v{AY+j}, v{AY+j}, v{AY+j} row_ror:{ror} row_mask:0xf bank_mask:0xf")
for sw in ("v_permlane16_swap_b32", "v_permlane32_swap_b32"):
    for j in range(8):
        I(f"v_mov_b32 v{76+j}, v{AY+j}")
    for j in range(8):
        I(f"{sw} v{AY+j}, v{76+j}")
    for j in range(8):
        I(f"v_add_f32 v{AY+j}, v{AY+j}, v{76+j}")
G, OMG = 20, 21
I(f"v_mov_b32 v{G}, 0")
for j in range(5):
    I(f"v_lshlrev_b32 v21, 16, v{GX+j}")
    I(f"v_and_b32 v22, s{S_HI}, v{GX+j}")
    I(f"v_lshlrev_b32 v23, 16, v{GW+j}")
    I(f"v_and_b32 v24, s{S_HI}, v{GW+j}")
    I(f"v_mul_f32 v21, v21, v23")
    I(f"v_mul_f32 v22, v22, v24")
    I(f"v_cvt_pk_bf16_f32 v21, v21, v22")
    I(f"v_lshlrev_b32 v22, 16, v21")
    I(f"v_and_b32 v21, s{S_HI}, v21")
    I(f"v_add_f32 v20, v20, v22")
    I(f"v_add_f32 v20, v20, v21")
I("v_add_f32_dpp v20, v20, v20 quad_perm:[1,0,3,2] row_mask:0xf bank_mask:0xf")
I("v_add_f32_dpp v20, v20, v20 quad_perm:[2,3,0,1] row_mask:0xf bank_mask:0xf")
wave_allreduce("v_add_f32", 20, 21)
rnd(20)
I(f"v_mul_f32 v20, s{S_LOG2E}, v20")
I("v_exp_f32 v20, -v20")
I("v_add_f32 v20, 1.0, v20")
I("v_rcp_f32 v20, v20")
rnd(20)
I("v_sub_f32 v21, 1.0, v20")
rnd(21)
for j in range(8):
    rnd(AY + j)
for j in range(4):
    I(f"v_mul_f32 v{AY+j}, v20, v{AY+j}")
    I(f"v_mul_f32 v{AZ+j}, v21, v{AZ+j}")
for j in range(8):
    rnd(AY + j)
for j in range(4):
    I(f"v_add_f32 v{AY+j}, v{AY+j}, v{AZ+j}")
I(f"v_cvt_pk_bf16_f32 v22, v{AY}, v{AY+1}")
I(f"v_cvt_pk_bf16_f32 v23, v{AY+2}, v{AY+3}")
I(f"v_lshlrev_b32 v24, 3, v{V_LANE}")
I(f"s_lshl_b32 s{S_T3}, s{S_T0}, 5")
I(f"s_add_u32 s{S_X}, s{S_X}, s{S_T3}")
I(f"v_cmp_gt_u32 vcc, 4, v{V_LANE}")
I(f"s_and_saveexec_b64 s[{S_SAVE}:{S_SAVE+1}], vcc")
I(f"buffer_store_dwordx2 v[22:23], v24, {sq(SRD_V)}, s{S_X} offen")
e.label("L_fin")
if P["STAMP"]:
    I("s_waitcnt vmcnt(0)")
    stamp(3)
    stamp_store()
e.raw("L_end:")
I("s_endpgm")

e.raw('.section .rodata,"a"')
e.raw(".p2align 6")
e.raw(f".amdhsa_kernel {KA}")
e.raw("  .amdhsa_next_free_vgpr 256")
e.raw("  .amdhsa_next_free_sgpr 102")
e.raw("  .amdhsa_accum_offset 256")
e.raw("  .amdhsa_group_segment_fixed_size 0")
e.raw("  .amdhsa_kernarg_size 104")
e.raw("  .amdhsa_user_sgpr_count 2")
e.raw("  .amdhsa_user_sgpr_kernarg_segment_ptr 1")
e.raw("  .amdhsa_system_sgpr_workgroup_id_x 1")
e.raw("  .amdhsa_float_denorm_mode_32 3")
e.raw(".end_amdhsa_kernel")
sys.stdout.write(e.text())
sys.stderr.write(f"nops: {e.nops}\n")
```

```python
import sys
from em import Em

P = dict(D=12, D1=12, WNT="nt", KVNT="nt", FNT="nt", STAMP=0, TL=0, ST2=0,
         PGU=12, PA=18, PC=28, G1=2,
         PSIG=24, T_CNT=8, T_PART=12, T_H=17, T_ZB=19, T_ZL=27, T_ZS=31, T_MLI=46, T_MLU=51,
         WOSTART=1, WORATE=2, SLEEP=1, NOCONS=0, NOWO=0)
for a in sys.argv[1:]:
    k, v = a.split("=")
    assert k in P, k
    P[k] = v if not v.lstrip("-").isdigit() else int(v)

KN = "gated_mix__mha_block_cached__glu_gated_bilinear__decode"
KA = KN + "_kernel"
LOG2E = "0x3fb8aa3b"
SCALE = "0x3db504f3"
WSO = 0x300000 if P["STAMP"] else 0
ML_OFF = WSO
Y_OFF = WSO + 0x10000
Z_OFF = WSO + 0xC0000
FP_OFF = WSO + 0x170000
QP_OFF = WSO + 0x280000
WS_BYTES = WSO + 0x380000
FPROW = 1728 * 4
SC1 = " sc1"
BIG = "0x40000000"
SPINMAX = 20000
L_CNT = 4100
L_QP, L_OP, L_NON, L_YP, L_ZP, L_S1 = 0, 2048, 4096, 4608, 14848, 25088
LDS_BYTES = 25088 + 4 * 2048


def fl(x):
    return "" if x in ("0", 0, "") else " " + str(x).replace("+", " ")


e = Em()
I = e.I

S_W = 3
SRD_GU, SRD_D, SRD_DBG, SRD_GW, SRD_OUT = 4, 8, 12, 16, 20
SRD_K, SRD_V, SRD_WQ, SRD_WO, SRD_X, SRD_WS = 44, 48, 52, 56, 60, 64
S_ZW, S_ZR, S_MLW, S_MLR = 24, 25, 26, 27
S_YW, S_YR, S_OUTO, S_NC = 32, 33, 38, 39
S_QPW, S_QPR = 42, 43
S_K, S_V, S_WQ, S_WO, S_X, S_REC, S_T0, S_T1, S_T2, S_T3 = 68, 69, 70, 71, 72, 73, 74, 75, 76, 77
S_LOG2E, S_SCALE, S_HI, S_B = 78, 79, 80, 81
S_SAVE = 82
S_ST = 84
S_GU, S_D0, S_D1, S_FPW, S_FPR, S_SPIN = 92, 93, 94, 95, 96, 97
S_M2 = 98
S_NON = 100

V_KV, V_WQ, V_WO = 1, 2, 3
V_MASK = 4
V_Q = 8
V_B0, V_B1 = 12, 16
V_ACC = 20
V_M, V_L, V_NM = 24, 25, 26
V_XQ = [27, 28, 29, 34]
V_TL = 27
V_C = 30
V_Z01, V_Z23, V_W, V_R1, V_R2, V_P = 34, 35, 36, 37, 38, 39
V_F = V_R1
V_LANE, V_T0, V_SIG, V_RHO, V_T1, V_T2, V_T3, V_LDSW = 40, 41, 42, 43, 44, 45, 46, 47
V_SC = 48
V_XF = 80
V_GUO, V_UU, V_CC, V_Y0 = 84, 85, 86, 87
V_G = V_GUO
POOL0 = 88


def srd(base, plo, nbytes):
    I(f"s_mov_b32 s{base}, s{plo}")
    I(f"s_mov_b32 s{base+1}, s{plo+1}")
    I(f"s_mov_b32 s{base+2}, {nbytes}")
    I(f"s_mov_b32 s{base+3}, 0x00020000")


def q4(b):
    return f"v[{b}:{b+3}]"


def q2(b):
    return f"v[{b}:{b+1}]"


def sq(b):
    return f"s[{b}:{b+3}]"


class Sched:
    def __init__(self, free):
        self.free = list(free)
        self.count = 0
        self.done = 0
        self.idx = {}
        self.slot = {}

    def note(self, key=None):
        if key is not None:
            self.idx[key] = self.count
        self.count += 1

    def take(self, key):
        s = self.free.pop(0)
        self.slot[key] = s
        self.idx[key] = self.count
        self.count += 1
        return s

    def wait(self, keys):
        need = max(self.idx[k] for k in keys) + 1
        if need > self.done:
            n = self.count - need
            assert n <= 63
            I(f"s_waitcnt vmcnt({n})")
            self.done = need

    def release(self, key):
        self.free.append(self.slot.pop(key))

    def tmp(self):
        return self.free.pop()


def bbuild(B, src, bc):
    for i in range(4):
        I(f"v_and_b32_dpp v{B+i}, v{src}, v{V_MASK+i} row_newbcast:{bc} row_mask:0xf bank_mask:0xf")


def xrow_reduce(op, v, tmp):
    I(f"v_mov_b32 v{tmp}, v{v}")
    I(f"v_permlane16_swap_b32 v{v}, v{tmp}")
    I(f"{op} v{v}, v{v}, v{tmp}")
    I(f"v_mov_b32 v{tmp}, v{v}")
    I(f"v_permlane32_swap_b32 v{v}, v{tmp}")
    I(f"{op} v{v}, v{v}, v{tmp}")


def wave_allreduce(op, v, tmp):
    I(f"{op}_dpp v{v}, v{v}, v{v} row_ror:4 row_mask:0xf bank_mask:0xf")
    I(f"{op}_dpp v{v}, v{v}, v{v} row_ror:8 row_mask:0xf bank_mask:0xf")
    xrow_reduce(op, v, tmp)


def multi_reduce(regs, tmps):
    for ror in (4, 8):
        for r in regs:
            I(f"v_add_f32_dpp v{r}, v{r}, v{r} row_ror:{ror} row_mask:0xf bank_mask:0xf")
    for sw in ("v_permlane16_swap_b32", "v_permlane32_swap_b32"):
        for r, t in zip(regs, tmps):
            I(f"v_mov_b32 v{t}, v{r}")
        for r, t in zip(regs, tmps):
            I(f"{sw} v{r}, v{t}")
        for r, t in zip(regs, tmps):
            I(f"v_add_f32 v{r}, v{r}, v{t}")


def rnd(v):
    I(f"v_cvt_pk_bf16_f32 v{v}, v{v}, v{v}")
    I(f"v_and_b32 v{v}, s{S_HI}, v{v}")


def stamp(i):
    if P["STAMP"]:
        I(f"s_memrealtime s[{S_ST+2*i}:{S_ST+2*i+1}]")


tl_state = dict(pend=None)


def tl(T):
    if not P["TL"]:
        return
    if tl_state["pend"] is not None:
        I("s_waitcnt lgkmcnt(0)")
        I(f"v_writelane_b32 v{V_TL}, s{S_ST+4}, {tl_state['pend']}")
    tl_state["pend"] = T
    if T is not None:
        I(f"s_memrealtime s[{S_ST+4}:{S_ST+5}]")


def stamp_store():
    if P["TL"]:
        I("s_mov_b64 exec, -1")
        tl(None)
        I(f"s_lshl_b32 s{S_T2}, s2, 2")
        I(f"s_add_u32 s{S_T2}, s{S_T2}, s{S_W}")
        I(f"s_lshl_b32 s{S_T2}, s{S_T2}, 8")
        I(f"s_add_u32 s{S_T2}, s{S_T2}, 0x100000")
        I(f"v_lshlrev_b32 v108, 2, v{V_LANE}")
        I(f"buffer_store_dword v{V_TL}, v108, {sq(SRD_WS)}, s{S_T2} offen")
    I("s_mov_b64 exec, -1")
    I("s_waitcnt lgkmcnt(0)")
    I(f"s_getreg_b32 s{S_T0}, hwreg(HW_REG_HW_ID)")
    I(f"s_getreg_b32 s{S_T1}, hwreg(HW_REG_XCC_ID)")
    I(f"s_mul_i32 s{S_T2}, s2, 128")
    I(f"s_lshl_b32 s{S_T3}, s{S_W}, 5")
    I(f"s_add_u32 s{S_T2}, s{S_T2}, s{S_T3}")
    for j, s in enumerate([S_ST, S_ST + 1, S_ST + 6, S_ST + 7, S_T0, S_T1, S_ST + 2, S_ST + 4]):
        I(f"v_mov_b32 v{100+j}, s{s}")
    I("v_mov_b32 v108, 0")
    I(f"v_cmp_eq_u32 vcc, 0, v{V_LANE}")
    I(f"s_and_saveexec_b64 s[{S_SAVE}:{S_SAVE+1}], vcc")
    I(f"buffer_store_dwordx4 v[100:103], v108, {sq(SRD_WS)}, s{S_T2} offen")
    I(f"buffer_store_dwordx4 v[104:107], v108, {sq(SRD_WS)}, s{S_T2} offen offset:16")


lab_n = [0]


def tag_check(tags, pre=None):
    if pre:
        pre()
    t = list(tags)
    if len(t) == 2:
        I(f"v_xor_b32 v{V_T0}, s{S_NON}, v{t[0]}")
        I(f"v_xor_b32 v{V_T1}, s{S_NON}, v{t[1]}")
        I(f"v_or_b32 v{V_T0}, v{V_T0}, v{V_T1}")
        I(f"v_cmp_ne_u32 vcc, 0, v{V_T0}")
        return
    I(f"v_max3_u32 v{V_T0}, v{t[0]}, v{t[1]}, v{t[2]}")
    I(f"v_min3_u32 v{V_T1}, v{t[0]}, v{t[1]}, v{t[2]}")
    r = t[3:]
    while len(r) >= 2:
        I(f"v_max3_u32 v{V_T0}, v{r[0]}, v{r[1]}, v{V_T0}")
        I(f"v_min3_u32 v{V_T1}, v{r[0]}, v{r[1]}, v{V_T1}")
        r = r[2:]
    if r:
        I(f"v_max_u32 v{V_T0}, v{r[0]}, v{V_T0}")
        I(f"v_min_u32 v{V_T1}, v{r[0]}, v{V_T1}")
    I(f"v_xor_b32 v{V_T0}, s{S_NON}, v{V_T0}")
    I(f"v_xor_b32 v{V_T1}, s{S_NON}, v{V_T1}")
    I(f"v_or_b32 v{V_T0}, v{V_T0}, v{V_T1}")
    I(f"v_cmp_ne_u32 vcc, 0, v{V_T0}")


def validated(tags, reissue, pre=None, skip_nc=False):
    lab_n[0] += 1
    ok, sp = f"L_ok{lab_n[0]}", f"L_spin{lab_n[0]}"
    if skip_nc:
        I(f"s_cmp_lg_u32 s{S_NC}, 0")
        I(f"s_cbranch_scc1 {ok}")
    tag_check(tags, pre)
    I(f"s_cbranch_vccz {ok}")
    I(f"s_mov_b32 s{S_SPIN}, 0")
    e.label(sp)
    reissue()
    I(f"s_add_u32 s{S_SPIN}, s{S_SPIN}, 1")
    I("s_waitcnt vmcnt(0)")
    I(f"s_cmp_gt_u32 s{S_SPIN}, {SPINMAX}")
    I(f"s_cbranch_scc1 {ok}")
    tag_check(tags, pre)
    I(f"s_cbranch_vccz {ok}")
    I("s_sleep 2")
    I(f"s_branch {sp}")
    e.label(ok)


for h in (f"; @launch grid=(256,1,1) block=(256,1,1) lds={LDS_BYTES}",
          '.amdgcn_target "amdgcn-amd-amdhsa--gfx950"', ".text", f".globl {KA}", ".p2align 8",
          f".type {KA},@function", f"{KA}:"):
    e.raw(h)

I("s_cmp_ge_u32 s2, 256")
I("s_cbranch_scc1 L_end")
stamp(0)
I(f"s_memrealtime s[{S_NON}:{S_NON+1}]")
I("s_load_dwordx16 s[16:31], s[0:1], 0")
I("s_load_dwordx8 s[32:39], s[0:1], 64")
I("s_load_dwordx2 s[40:41], s[0:1], 96")
I(f"v_and_b32 v{V_LANE}, 63, v0")
I(f"v_lshrrev_b32 v{V_T0}, 6, v0")
I(f"v_readfirstlane_b32 s{S_W}, v{V_T0}")
I(f"v_lshrrev_b32 v{V_SIG}, 4, v{V_LANE}")
I(f"v_and_b32 v{V_RHO}, 15, v{V_LANE}")
I(f"v_lshlrev_b32 v{V_KV}, 4, v{V_LANE}")
I(f"v_lshlrev_b32 v{V_WQ}, 13, v{V_SIG}")
I(f"v_lshl_add_u32 v{V_WQ}, v{V_RHO}, 4, v{V_WQ}")
I(f"s_and_b32 s{S_T0}, s2, 7")
I(f"s_lshr_b32 s{S_T1}, s2, 3")
I(f"s_and_b32 s{S_T2}, s{S_T1}, 3")
I(f"s_lshl_b32 s{S_T0}, s{S_T0}, 2")
I(f"s_add_u32 s{S_T0}, s{S_T0}, s{S_T2}")
I(f"s_lshr_b32 s{S_T1}, s{S_T1}, 2")
I(f"s_lshr_b32 s{S_B}, s{S_T1}, 1")
I(f"s_and_b32 s{S_T1}, s{S_T1}, 1")
I(f"s_lshl_b32 s{S_REC}, s{S_B}, 5")
I(f"s_add_u32 s{S_REC}, s{S_REC}, s{S_T0}")
I(f"s_lshl_b32 s{S_REC}, s{S_REC}, 1")
I(f"s_add_u32 s{S_REC}, s{S_REC}, s{S_T1}")
I(f"s_lshl_b32 s{S_T2}, s{S_B}, 1")
I(f"s_add_u32 s{S_T2}, s{S_T2}, s{S_T1}")
I(f"s_mul_i32 s{S_X}, s{S_T2}, 80")
I(f"s_mul_i32 s{S_T3}, s{S_W}, 20")
I(f"s_add_u32 s{S_X}, s{S_X}, s{S_T3}")
I(f"v_lshl_add_u32 v{V_T0}, v{V_RHO}, 2, v{V_SIG}")
I(f"v_add_u32 v{V_T0}, s{S_X}, v{V_T0}")
I(f"v_lshlrev_b32 v{V_T0}, 1, v{V_T0}")
I(f"s_lshl_b32 s{S_WQ}, s{S_T0}, 8")
I(f"s_lshl_b32 s{S_T3}, s{S_X}, 13")
I(f"s_add_u32 s{S_WQ}, s{S_WQ}, s{S_T3}")
I(f"s_lshl_b32 s{S_QPW}, s{S_T0}, 2")
I(f"s_add_u32 s{S_QPR}, s{S_QPW}, s{S_B}")
I(f"s_add_u32 s{S_QPW}, s{S_QPW}, s{S_W}")
I(f"s_lshl_b32 s{S_QPW}, s{S_QPW}, 3")
I(f"s_add_u32 s{S_QPW}, s{S_QPW}, s{S_T2}")
I(f"s_lshl_b32 s{S_QPW}, s{S_QPW}, 10")
I(f"s_add_u32 s{S_QPW}, s{S_QPW}, {QP_OFF}")
I(f"s_lshl_b32 s{S_QPR}, s{S_QPR}, 2")
I(f"s_add_u32 s{S_QPR}, s{S_QPR}, s{S_W}")
I(f"s_lshl_b32 s{S_QPR}, s{S_QPR}, 11")
I(f"s_add_u32 s{S_QPR}, s{S_QPR}, {QP_OFF}")
I(f"s_lshl_b32 s{S_SPIN}, s{S_T0}, 3")
I(f"s_add_u32 s{S_SPIN}, s{S_SPIN}, 4")
I(f"v_mov_b32 v{V_T1}, 0x1000")
I(f"v_cmp_eq_u32 vcc, 0, v0")
I(f"v_cndmask_b32 v{V_T1}, v{V_T1}, 0, vcc")
I(f"v_mov_b32 v{V_P}, 0")
I(f"s_lshl_b32 s{S_K}, s{S_REC}, 19")
I(f"s_lshl_b32 s{S_T3}, s{S_W}, 12")
I(f"s_add_u32 s{S_K}, s{S_K}, s{S_T3}")
I(f"s_mov_b32 s{S_V}, s{S_K}")
I(f"s_lshl_b32 s{S_WO}, s{S_T0}, 7")
I(f"s_lshl_b32 s{S_T3}, s{S_W}, 5")
I(f"s_add_u32 s{S_WO}, s{S_WO}, s{S_T3}")
I(f"s_mul_i32 s{S_WO}, s{S_WO}, 1280")
I("s_waitcnt lgkmcnt(0)")
srd(SRD_DBG, 38, 256)
I(f"s_or_b32 s{S_NON}, s{S_NON}, 1")
I(f"v_mov_b32 v{V_R2}, s{S_NON}")
sc = Sched([POOL0 + 4 * i for i in range((256 - POOL0) // 4)])
I(f"v_cmp_eq_u32 vcc, 0, v{V_LANE}")
I(f"s_and_saveexec_b64 s[{S_SAVE}:{S_SAVE+1}], vcc")
I(f"buffer_atomic_cmpswap v[{V_R2}:{V_P}], v{V_T1}, {sq(SRD_DBG)}, s{S_SPIN} offen sc0 sc1")
sc.note(("non",))
I(f"s_mov_b64 exec, s[{S_SAVE}:{S_SAVE+1}]")
srd(SRD_X, 16, 5120)
srd(SRD_WQ, 22, 5242880)
for b in range(4):
    I(f"buffer_load_ushort v{V_XQ[b]}, v{V_T0}, {sq(SRD_X)}, 0 offen offset:{b*1280}")
    sc.note(("x", b))
srd(SRD_K, 18, 0x8000000)


def issue(key):
    kind = key[0]
    s = sc.take(key)
    if kind == "wq":
        I(f"buffer_load_dwordx4 {q4(s)}, v{V_WQ}, {sq(SRD_WQ)}, s{S_WQ} offen{fl(P['WNT'])}")
        if key[1] < 4:
            I(f"s_add_u32 s{S_WQ}, s{S_WQ}, 32768")
    elif kind in ("k", "v"):
        srdn, sreg = (SRD_K, S_K) if kind == "k" else (SRD_V, S_V)
        t = key[1] & 3
        I(f"buffer_load_dwordx4 {q4(s)}, v{V_KV}, {sq(srdn)}, s{sreg} offen offset:{t*1024}{fl(P['KVNT'])}")
        if t == 3 and key[1] < 127:
            I(f"s_add_u32 s{sreg}, s{sreg}, 16384")
    elif kind == "wo":
        i, c = key[1], key[2]
        I(f"buffer_load_dwordx4 {q4(s)}, v{V_WO}, {sq(SRD_WO)}, s{S_WO} offen offset:{c*256}{fl(P['WNT'])}")
        if c == 4 and i < 7 and not P["NOWO"]:
            I(f"s_add_u32 s{S_WO}, s{S_WO}, 5120")
    elif kind == "gu":
        I(f"buffer_load_dwordx4 {q4(s)}, v{V_GUO}, {sq(SRD_GU)}, s{S_GU} offen{fl(P['FNT'])}")
        if key[1] < 4:
            I(f"s_add_u32 s{S_GU}, s{S_GU}, {8*3456}")
    elif kind == "d":
        x, c = key[1], key[2]
        I(f"buffer_load_dwordx4 {q4(s)}, v{V_T1 if x else V_WO}, {sq(SRD_D)}, s{S_D0+x} offen offset:{c*256}{fl(P['FNT'])}")


main = [("wq", i) for i in range(5)]
main += [("k", n) for n in range(128)]
main += [("v", n) for n in range(128)]
side = [("wo", i, c) for i in range(8) for c in range(5)]
mp = 0
state = dict(D=P["D1"], side_due=0, reserve=0)


def main_held():
    return sum(1 for k in sc.slot if k[0] in ("k", "v"))


def main_inflight():
    return sum(1 for k in main[:mp] if sc.idx[k] >= sc.done)


def fill(maxn=99):
    global mp
    n = 0
    while mp < len(main) and main_inflight() < state["D"] and n < maxn:
        if len(sc.free) > state["reserve"]:
            issue(main[mp])
        else:
            break
        mp += 1
        n += 1
    while side and state["side_due"] > 0 and n < maxn:
        rem = len(main) - mp
        if len(sc.free) > state["reserve"] + max(0, min(rem, state["D"]) - main_held()):
            issue(side.pop(0))
            state["side_due"] -= 1
            n += 1
        else:
            break
    return n


fill()
srd(SRD_V, 20, 0x8000000)
srd(SRD_WO, 24, 0 if P["NOWO"] else 5242880)
if P["NOWO"]:
    I(f"s_mov_b32 s{S_WO}, 0")
srd(SRD_WS, 40, WS_BYTES)
srd(SRD_D, 32, 2211840)
srd(SRD_GW, 34, 1280)
srd(SRD_OUT, 36, 5120)
I(f"v_mul_u32_u24 v{V_WO}, 1280, v{V_SIG}")
I(f"v_lshl_add_u32 v{V_WO}, v{V_RHO}, 4, v{V_WO}")
I(f"v_and_b32 v{V_CC}, 7, v{V_LANE}")
I(f"v_lshrrev_b32 v{V_T2}, 1, v{V_CC}")
I(f"v_and_b32 v{V_T3}, 1, v{V_LANE}")
I(f"v_lshlrev_b32 v{V_T3}, 4, v{V_T3}")
I(f"v_mov_b32 v{V_T0}, 0xffff")
I(f"v_lshlrev_b32 v{V_T3}, v{V_T3}, v{V_T0}")
for i in range(4):
    I(f"v_cmp_eq_u32 vcc, {i}, v{V_T2}")
    I(f"v_cndmask_b32 v{V_MASK+i}, 0, v{V_T3}, vcc")
I(f"v_lshl_add_u32 v{V_LDSW}, v{V_SIG}, 5, v{V_CC}")
I(f"v_lshlrev_b32 v{V_LDSW}, 2, v{V_LDSW}")
I(f"s_mov_b32 s{S_LOG2E}, {LOG2E}")
I(f"s_mov_b32 s{S_SCALE}, {SCALE}")
I(f"s_mov_b32 s{S_HI}, 0xffff0000")
I(f"s_mul_i32 s{S_T0}, s2, 1214")
I(f"s_lshr_b32 s{S_T0}, s{S_T0}, 15")
I(f"s_mul_i32 s{S_T1}, s{S_T0}, 27")
I(f"s_sub_u32 s{S_T1}, s2, s{S_T1}")
I(f"s_and_b32 s{S_T2}, s{S_W}, 1")
I(f"s_lshr_b32 s{S_T3}, s{S_W}, 1")
I(f"s_cmp_eq_u32 s{S_T2}, 0")
I(f"s_cselect_b32 s{SRD_GU}, s28, s30")
I(f"s_cselect_b32 s{SRD_GU+1}, s29, s31")
I(f"s_mov_b32 s{SRD_GU+2}, 2211840")
I(f"s_mov_b32 s{SRD_GU+3}, 0x00020000")
I(f"s_lshl_b32 s{S_FPW}, s{S_T0}, 1")
I(f"s_add_u32 s{S_FPW}, s{S_FPW}, s{S_T3}")
I(f"s_mul_i32 s{S_GU}, s{S_FPW}, {40*3456}")
I(f"s_lshl_b32 s{S_T3}, s{S_T1}, 7")
I(f"s_add_u32 s{S_GU}, s{S_GU}, s{S_T3}")
I(f"s_mul_i32 s{S_X}, s{S_FPW}, 80")
I(f"s_lshl_b32 s{S_FPW}, s{S_FPW}, 1")
I(f"s_add_u32 s{S_FPW}, s{S_FPW}, s{S_T2}")
I(f"s_mul_i32 s{S_FPW}, s{S_FPW}, {4*FPROW}")
I(f"s_lshl_b32 s{S_T3}, s{S_T1}, 8")
I(f"s_add_u32 s{S_FPW}, s{S_FPW}, s{S_T3}")
I(f"s_add_u32 s{S_FPW}, s{S_FPW}, {FP_OFF}")
I(f"v_lshrrev_b32 v{V_UU}, 3, v{V_RHO}")
I(f"v_lshl_add_u32 v{V_T0}, v{V_UU}, 2, v{V_SIG}")
I(f"v_mul_u32_u24 v{V_GUO}, 3456, v{V_T0}")
I(f"v_lshl_add_u32 v{V_GUO}, v{V_CC}, 4, v{V_GUO}")
I("s_cmp_lt_u32 s2, 216")
I(f"s_cselect_b32 s{S_GU}, s{S_GU}, 0")
I(f"s_cselect_b32 s{S_T3}, 0, {BIG}")
I(f"v_or_b32 v{V_GUO}, s{S_T3}, v{V_GUO}")
I(f"v_lshl_add_u32 v{V_T1}, v{V_CC}, 3, v{V_T0}")
I(f"v_lshlrev_b32 v{V_T1}, 1, v{V_T1}")
I(f"v_add_u32 v{V_T1}, s{S_X}, v{V_T1}")
for b in range(4):
    I(f"buffer_load_ushort v{V_XF+b}, v{V_T1}, {sq(SRD_X)}, 0 offen offset:{b*1280}")
    sc.note(("xf", b))
for i in range(5):
    issue(("gu", i))
state["reserve"] = 4
I(f"s_and_b32 s{S_T0}, s{S_REC}, 63")
I(f"s_mul_i32 s{S_T1}, s{S_T0}, 27")
I(f"s_lshl_b32 s{S_T2}, s{S_W}, 2")
I(f"s_add_u32 s{S_T1}, s{S_T1}, s{S_T2}")
I(f"s_mul_i32 s{S_D0}, s{S_T1}, 1280")
I(f"s_add_u32 s{S_D1}, s{S_D0}, {16*1280}")
I(f"s_cmp_eq_u32 s{S_W}, 3")
I(f"s_cselect_b32 s{S_D1}, 0, s{S_D1}")
I(f"s_mul_i32 s{S_FPR}, s{S_B}, {FPROW}")
I(f"s_lshl_b32 s{S_T1}, s{S_T1}, 2")
I(f"s_add_u32 s{S_FPR}, s{S_FPR}, s{S_T1}")
I(f"s_add_u32 s{S_FPR}, s{S_FPR}, {FP_OFF}")
I(f"s_lshl_b32 s{S_T2}, s{S_REC}, 2")
I(f"s_add_u32 s{S_T2}, s{S_T2}, s{S_W}")
I(f"s_mul_i32 s{S_YW}, s{S_T2}, 640")
I(f"s_add_u32 s{S_ZW}, s{S_YW}, {Z_OFF}")
I(f"s_add_u32 s{S_YW}, s{S_YW}, {Y_OFF}")
I(f"s_lshl_b32 s{S_MLW}, s{S_T2}, 4")
I(f"s_and_b32 s{S_MLR}, s{S_MLW}, -128")
I(f"s_add_u32 s{S_MLW}, s{S_MLW}, {ML_OFF}")
I(f"s_add_u32 s{S_MLR}, s{S_MLR}, {ML_OFF}")
I(f"s_lshl_b32 s{S_T1}, s{S_B}, 6")
I(f"s_mul_i32 s{S_YR}, s{S_T1}, 2560")
I(f"s_lshl_b32 s{S_T3}, s{S_T0}, 6")
I(f"s_add_u32 s{S_YR}, s{S_YR}, s{S_T3}")
I(f"s_add_u32 s{S_ZR}, s{S_YR}, {Z_OFF}")
I(f"s_add_u32 s{S_YR}, s{S_YR}, {Y_OFF}")
I(f"s_mul_i32 s{S_X}, s{S_B}, 1280")
I(f"s_lshl_b32 s{S_T3}, s{S_T0}, 5")
I(f"s_add_u32 s{S_OUTO}, s{S_X}, s{S_T3}")
I(f"s_lshl_b32 s{S_T3}, s{S_W}, 6")
I(f"s_add_u32 s{S_T3}, s{S_T3}, s{S_T0}")
I(f"s_cmp_lt_u32 s{S_T3}, 40")
I(f"s_cselect_b32 s{S_NC}, 0, {BIG}")
I(f"s_cselect_b32 s{S_ZR}, s{S_ZR}, {Z_OFF}")
for j in range(4):
    I(f"v_mov_b32 v{V_C+j}, -1")
I(f"v_cmp_gt_u32 vcc, 40, v{V_LANE}")
I(f"s_and_saveexec_b64 s[{S_SAVE}:{S_SAVE+1}], vcc")
I(f"buffer_store_dwordx4 v[{V_C}:{V_C+3}], v{V_KV}, {sq(SRD_WS)}, s{S_YW} offen{SC1}")
sc.note()
I(f"buffer_store_dwordx4 v[{V_C}:{V_C+3}], v{V_KV}, {sq(SRD_WS)}, s{S_ZW} offen{SC1}")
sc.note()
I(f"s_mov_b64 exec, s[{S_SAVE}:{S_SAVE+1}]")
I(f"v_mov_b32 v{V_T3}, 0")
I(f"ds_write_b32 v{V_T3}, v{V_T3} offset:{L_CNT}")

sc.wait([("x", 3)])
for b in range(4):
    I(f"v_lshl_or_b32 v{V_XQ[b]}, v{V_XQ[b]}, 16, v{V_XQ[b]}")

QA = [V_SC + 4 * b for b in range(4)]
n = 0
for i in range(5):
    sc.wait([("wq", i)])
    for b in range(4):
        B = [V_B0, V_B1][n & 1]
        n += 1
        bbuild(B, V_XQ[b], i)
        cc = "0" if i == 0 else q4(QA[b])
        I(f"v_mfma_f32_16x16x32_bf16 {q4(QA[b])}, {q4(sc.slot[('wq', i)])}, {q4(B)}, {cc}")
    sc.release(("wq", i))
    fill()
I(f"v_mov_b32 v{V_T1}, s{S_NON}")
I(f"v_cmp_eq_u32 vcc, 0, v{V_R2}")
I(f"v_cndmask_b32 v{V_R2}, v{V_R2}, v{V_T1}, vcc")
I(f"v_mov_b32 v{V_T3}, 0")
I(f"s_lshl_b32 s{S_T3}, s{S_W}, 11")
I(f"v_add_u32 v{V_T0}, s{S_T3}, v{V_LDSW}")
I(f"v_cmp_eq_u32 vcc, 0, v0")
I(f"s_and_saveexec_b64 s[{S_SAVE}:{S_SAVE+1}], vcc")
I(f"ds_write_b32 v{V_T3}, v{V_R2} offset:{L_NON}")
I(f"s_mov_b64 exec, s[{S_SAVE}:{S_SAVE+1}]")
for b in range(4):
    for r in range(4):
        I(f"ds_write_b32 v{V_T0}, v{QA[b]+r} offset:{L_YP+b*512+r*32}")
I(f"s_lshl_b32 s{S_T3}, s{S_W}, 9")
I(f"v_lshl_add_u32 v{V_T1}, v{V_LANE}, 3, s{S_T3}")
I("s_waitcnt lgkmcnt(0)")
I("s_barrier")
I(f"ds_read_b32 v{V_R2}, v{V_T3} offset:{L_NON}")
for w in range(4):
    I(f"ds_read_b64 {q2(V_SC+2*w)}, v{V_T1} offset:{L_YP+w*2048}")
I("s_waitcnt lgkmcnt(0)")
I(f"v_add_f32 v{V_SC}, v{V_SC}, v{V_SC+2}")
I(f"v_add_f32 v{V_SC+1}, v{V_SC+1}, v{V_SC+3}")
I(f"v_add_f32 v{V_SC+4}, v{V_SC+4}, v{V_SC+6}")
I(f"v_add_f32 v{V_SC+5}, v{V_SC+5}, v{V_SC+7}")
I(f"v_add_f32 v{V_SC+8}, v{V_SC}, v{V_SC+4}")
I(f"v_add_f32 v{V_SC+10}, v{V_SC+1}, v{V_SC+5}")
I(f"v_mov_b32 v{V_SC+9}, v{V_R2}")
I(f"v_mov_b32 v{V_SC+11}, v{V_R2}")
I(f"v_readfirstlane_b32 s{S_NON}, v{V_R2}")
I(f"buffer_store_dwordx4 {q4(V_SC+8)}, v{V_KV}, {sq(SRD_WS)}, s{S_QPW} offen{SC1}")
sc.note()
if P["ST2"]:
    stamp(2)


def advance(upto):
    while mp < upto and len(sc.free) > state["reserve"]:
        pend = [k for k in main[:mp] if sc.idx[k] >= sc.done]
        if len(pend) >= state["D"]:
            sc.wait(pend[:min(P["G1"], len(pend))])
        fill(min(P["G1"], upto - mp))


advance(5 + P["PGU"])
state["reserve"] = 0
acc = [sc.tmp() for _ in range(4)]
sc.wait([("gu", 4), ("xf", 3)])
for b in range(4):
    I(f"v_lshl_or_b32 v{V_XF+b}, v{V_XF+b}, 16, v{V_XF+b}")
n = 0
for i in range(5):
    for b in range(4):
        B = [V_B0, V_B1][n & 1]
        y = [V_Y0, V_T0][n & 1]
        n += 1
        I(f"v_mov_b32_dpp v{y}, v{V_XF+b} row_newbcast:{i} row_mask:0xf bank_mask:0x3")
        I(f"v_mov_b32_dpp v{y}, v{V_XF+b} row_newbcast:{8+i} row_mask:0xf bank_mask:0xc")
        for k in range(4):
            I(f"v_and_b32 v{B+k}, v{y}, v{V_MASK+k}")
        cc = "0" if i == 0 else q4(acc[b])
        I(f"v_mfma_f32_16x16x32_bf16 {q4(acc[b])}, {q4(sc.slot[('gu', i)])}, {q4(B)}, {cc}")
    sc.release(("gu", i))
fill()
I(f"v_lshrrev_b32 v{V_T0}, 1, v{V_SIG}")
I(f"v_and_b32 v{V_T1}, 1, v{V_SIG}")
I(f"v_lshl_add_u32 v{V_T1}, v{V_T1}, 5, v{V_CC}")
I(f"v_lshlrev_b32 v{V_T1}, 2, v{V_T1}")
I(f"v_lshl_add_u32 v{V_T1}, v{V_T0}, 10, v{V_T1}")
I(f"s_lshl_b32 s{S_T3}, s{S_W}, 11")
I(f"v_add_u32 v{V_T1}, s{S_T3}, v{V_T1}")
I(f"v_add_u32 v{V_T2}, s{S_T3}, v{V_KV}")
I(f"v_cmp_eq_u32 vcc, v{V_T0}, v{V_UU}")
I(f"s_and_saveexec_b64 s[{S_SAVE}:{S_SAVE+1}], vcc")
for b in range(4):
    for r in range(4):
        I(f"ds_write_b32 v{V_T1}, v{acc[b]+r} offset:{L_S1+b*256+r*32}")
I(f"s_mov_b64 exec, s[{S_SAVE}:{S_SAVE+1}]")
I(f"v_mul_u32_u24 v{V_T0}, {FPROW}, v{V_SIG}")
I(f"v_lshl_add_u32 v{V_T0}, v{V_RHO}, 4, v{V_T0}")
I("s_waitcnt lgkmcnt(0)")
I(f"ds_read_b128 {q4(acc[0])}, v{V_T2} offset:{L_S1}")
I(f"ds_read_b128 {q4(acc[1])}, v{V_T2} offset:{L_S1+1024}")
I("s_waitcnt lgkmcnt(0)")
for j in range(4):
    I(f"v_add_f32 v{acc[0]+j}, v{acc[0]+j}, v{acc[1]+j}")
I(f"buffer_store_dwordx4 {q4(acc[0])}, v{V_T0}, {sq(SRD_WS)}, s{S_FPW} offen{SC1}")
sc.note(("fpst",))
e.nop(2)
for a in acc:
    sc.free.append(a)


def signal():
    sc.wait([("fpst",)])
    I(f"v_mov_b32 v{V_T0}, 0")
    I(f"v_mov_b32 v{V_T1}, 1")
    I(f"v_cmp_eq_u32 vcc, 0, v{V_LANE}")
    I(f"s_and_saveexec_b64 s[{S_SAVE}:{S_SAVE+1}], vcc")
    I(f"ds_add_rtn_u32 v{V_T2}, v{V_T0}, v{V_T1} offset:{L_CNT}")
    I(f"s_and_b32 s{S_T3}, s2, 7")
    I(f"s_lshl_b32 s{S_T3}, s{S_T3}, 5")
    I("s_waitcnt lgkmcnt(0)")
    I(f"v_cmp_ne_u32 vcc, 3, v{V_T2}")
    I(f"v_mov_b32 v{V_T2}, 0x1000")
    I(f"v_cndmask_b32 v{V_T0}, v{V_T0}, v{V_T2}, vcc")
    I(f"buffer_atomic_add v{V_T1}, v{V_T0}, {sq(SRD_DBG)}, s{S_T3} offen{SC1}")
    sc.note()
    I(f"s_mov_b64 exec, s[{S_SAVE}:{S_SAVE+1}]")


PL = V_SC + 16


def poll_issue():
    I(f"buffer_load_dwordx4 {q4(PL)}, v{V_KV}, {sq(SRD_WS)}, s{S_QPR} offen{SC1}")
    I(f"buffer_load_dwordx4 {q4(PL+4)}, v{V_KV}, {sq(SRD_WS)}, s{S_QPR} offen offset:1024{SC1}")


advance(5 + P["PA"])
poll_issue()
sc.note()
sc.note(("poll",))
advance(5 + P["PSIG"])
signal()
advance(5 + P["PC"])
sc.wait([("poll",)])
validated([PL + 1, PL + 3, PL + 5, PL + 7], poll_issue)
state["D"] = P["D"]
I(f"v_add_f32 v{PL}, v{PL}, v{PL+4}")
I(f"v_add_f32 v{PL+1}, v{PL+2}, v{PL+6}")
I(f"s_lshl_b32 s{S_T3}, s{S_W}, 9")
I(f"v_lshl_add_u32 v{V_T0}, v{V_LANE}, 3, s{S_T3}")
I(f"ds_write_b64 v{V_T0}, {q2(PL)} offset:{L_QP}")
I(f"v_lshlrev_b32 v{V_T1}, 5, v{V_RHO}")
I("s_waitcnt lgkmcnt(0)")
I("s_barrier")
for w in range(4):
    I(f"ds_read_b128 {q4(V_SC+8*w)}, v{V_T1} offset:{L_QP+w*512}")
    I(f"ds_read_b128 {q4(V_SC+8*w+4)}, v{V_T1} offset:{L_QP+w*512+16}")
I("s_waitcnt lgkmcnt(4)")
for j in range(8):
    I(f"v_add_f32 v{V_SC+j}, v{V_SC+j}, v{V_SC+8+j}")
I("s_waitcnt lgkmcnt(0)")
for j in range(8):
    I(f"v_add_f32 v{V_SC+16+j}, v{V_SC+16+j}, v{V_SC+24+j}")
for j in range(8):
    I(f"v_add_f32 v{V_SC+j}, v{V_SC+j}, v{V_SC+16+j}")
for j in range(4):
    I(f"v_cvt_pk_bf16_f32 v{V_Q+j}, v{V_SC+2*j}, v{V_SC+2*j+1}")
I(f"v_mov_b32 v{V_M}, 0xff7fffff")
I(f"v_mov_b32 v{V_L}, 0")
stamp(1)

BANK_OF_T = [0, 2, 1, 3]


def post_score(T):
    I(f"v_cvt_pk_bf16_f32 v{V_R1}, v{V_SC+T}, v{V_SC+T}")
    I(f"v_and_b32 v{V_R1}, s{S_HI}, v{V_R1}")
    I(f"v_mul_f32 v{V_R1}, s{S_SCALE}, v{V_R1}")
    I(f"v_cvt_pk_bf16_f32 v{V_R1}, v{V_R1}, v{V_R1}")
    I(f"v_and_b32 v{V_SC+T}, s{S_HI}, v{V_R1}")
    I(f"v_max_f32 v{V_M}, v{V_M}, v{V_SC+T}")


H = {}


def spin_until(check, reissue, skip=None):
    lab_n[0] += 1
    ok, sp = f"L_ok{lab_n[0]}", f"L_spin{lab_n[0]}"
    if skip is not None:
        I(f"s_cmp_lg_u32 s{skip}, 0")
        I(f"s_cbranch_scc1 {ok}")
    check()
    I(f"s_cbranch_vccz {ok}")
    I(f"s_mov_b32 s{S_SPIN}, 0")
    e.label(sp)
    I("s_sleep 4")
    reissue()
    I(f"s_add_u32 s{S_SPIN}, s{S_SPIN}, 1")
    I("s_waitcnt vmcnt(0)")
    I(f"s_cmp_gt_u32 s{S_SPIN}, {SPINMAX}")
    I(f"s_cbranch_scc1 {ok}")
    check()
    I(f"s_cbranch_vccnz {sp}")
    e.label(ok)


def cnt_issue():
    I(f"s_lshl_b32 s{S_T3}, s{S_W}, 12")
    I(f"v_lshl_add_u32 v{V_T0}, v{V_CC}, 5, s{S_T3}")
    I(f"buffer_load_dword v{V_Y0}, v{V_T0}, {sq(SRD_DBG)}, 0 offen{SC1}")


def hook_cnt():
    cnt_issue()
    sc.note(("cnt",))


def row_valid():
    I(f"s_lshl_b32 s{S_T3}, s{S_W}, 2")
    I(f"v_add_u32 v{V_T2}, s{S_T3}, v{V_SIG}")
    I(f"v_cmp_gt_u32 vcc, 11, v{V_T2}")


def hook_part():
    sc.wait([("cnt",)])
    spin_until(lambda: I(f"v_cmp_gt_u32 vcc, 32, v{V_Y0}"), cnt_issue, skip=S_W)
    I("s_barrier")
    A = H["fp"] = sc.tmp()
    I(f"v_mul_u32_u24 v{V_T0}, {8*FPROW}, v{V_RHO}")
    I(f"v_lshl_add_u32 v{V_T0}, v{V_SIG}, 2, v{V_T0}")
    I(f"s_add_u32 s{S_T3}, s{S_FPR}, {4*FPROW}")
    for x in range(2):
        for m in range(2):
            so = S_FPR if m == 0 else S_T3
            I(f"buffer_load_dword v{A+2*x+m}, v{V_T0}, {sq(SRD_WS)}, s{so} offen offset:{x*64}{SC1}")
            sc.note()
    row_valid()
    I(f"v_mov_b32 v{V_T1}, {BIG}")
    I(f"v_cndmask_b32 v{V_T1}, v{V_T1}, v{V_WO}, vcc")
    for x in range(2):
        for c in range(5):
            issue(("d", x, c))
    state["reserve"] = 5


def hook_h():
    A = H["fp"]
    state["reserve"] = 0
    acc = [sc.tmp() for _ in range(5)]
    sc.wait([("d", 1, 4)])
    for ror in (8, 4, 2, 1):
        for r in range(4):
            I(f"v_add_f32_dpp v{A+r}, v{A+r}, v{A+r} row_ror:{ror} row_mask:0xf bank_mask:0xf")
    for x in range(2):
        g_, u_ = A + 2 * x, A + 2 * x + 1
        I(f"v_cvt_pk_bf16_f32 v{V_T0}, v{g_}, v{u_}")
        I(f"v_lshlrev_b32 v{V_T1}, 16, v{V_T0}")
        I(f"v_and_b32 v{V_T0}, s{S_HI}, v{V_T0}")
        I(f"v_mul_f32 v{V_T0}, v{V_T0}, v{V_T1}")
        I(f"v_cvt_pk_bf16_f32 v{g_}, v{V_T0}, v{V_T0}")
    row_valid()
    I(f"v_cndmask_b32 v{A+2}, 0, v{A+2}, vcc")
    for x in range(2):
        B = [V_B0, V_B1][x]
        for k in range(4):
            I(f"v_and_b32 v{B+k}, v{A+2*x}, v{V_MASK+k}")
    for x in range(2):
        B = [V_B0, V_B1][x]
        for c in range(5):
            cc = "0" if x == 0 else q4(acc[c])
            I(f"v_mfma_f32_16x16x32_bf16 {q4(acc[c])}, {q4(sc.slot[('d', x, c)])}, {q4(B)}, {cc}")
            sc.release(("d", x, c))
    sc.free.append(A)
    fill()
    I(f"s_mul_i32 s{S_T3}, s{S_W}, 2560")
    I(f"v_add_u32 v{V_T0}, s{S_T3}, v{V_LDSW}")
    for c in range(5):
        for r in range(4):
            I(f"ds_write_b32 v{V_T0}, v{acc[c]+r} offset:{L_ZP+c*512+r*32}")
    I("s_waitcnt lgkmcnt(0)")
    sc.free += acc


def hook_zb():
    R = [sc.tmp() for _ in range(4)]
    I(f"s_mul_i32 s{S_T3}, s{S_W}, 640")
    I(f"v_add_u32 v{V_T1}, s{S_T3}, v{V_KV}")
    I("s_barrier")
    I(f"v_cmp_gt_u32 vcc, 40, v{V_LANE}")
    I(f"s_and_saveexec_b64 s[{S_SAVE}:{S_SAVE+1}], vcc")
    for w in range(4):
        I(f"ds_read_b128 {q4(R[w])}, v{V_T1} offset:{L_ZP+w*2560}")
    I("s_waitcnt lgkmcnt(0)")
    for j in range(4):
        I(f"v_add_f32 v{R[0]+j}, v{R[0]+j}, v{R[1]+j}")
        I(f"v_add_f32 v{R[2]+j}, v{R[2]+j}, v{R[3]+j}")
    for j in range(4):
        I(f"v_add_f32 v{R[0]+j}, v{R[0]+j}, v{R[2]+j}")
    for j in range(4):
        I(f"v_min_u32 v{R[0]+j}, -2, v{R[0]+j}")
    I(f"buffer_store_dwordx4 {q4(R[0])}, v{V_KV}, {sq(SRD_WS)}, s{S_ZW} offen{SC1}")
    sc.note()
    I(f"s_mov_b64 exec, s[{S_SAVE}:{S_SAVE+1}]")
    e.nop(2)
    sc.free += R


def sentinel_check(regs):
    I(f"v_max3_u32 v{V_T0}, v{regs[0]}, v{regs[1]}, v{regs[2]}")
    for j in range(3, len(regs) - 1, 2):
        I(f"v_max3_u32 v{V_T0}, v{regs[j]}, v{regs[j+1]}, v{V_T0}")
    I(f"v_max_u32 v{V_T0}, v{regs[-1]}, v{V_T0}")
    I(f"v_cmp_eq_u32 vcc, -1, v{V_T0}")


def z_issue():
    Z = H["z"]
    I(f"v_lshrrev_b32 v{V_T1}, 2, v{V_LANE}")
    I(f"v_and_b32 v{V_T2}, 3, v{V_LANE}")
    I(f"v_mul_u32_u24 v{V_T1}, 2560, v{V_T1}")
    I(f"v_lshl_add_u32 v{V_T1}, v{V_T2}, 4, v{V_T1}")
    I(f"v_or_b32 v{V_T1}, s{S_NC}, v{V_T1}")
    for i in range(4):
        I(f"s_add_u32 s{S_T3}, s{S_ZR}, {i*16*2560}")
        I(f"buffer_load_dwordx4 {q4(Z[i])}, v{V_T1}, {sq(SRD_WS)}, s{S_T3} offen{SC1}")


def hook_zl():
    H["z"] = [sc.tmp() for _ in range(4)]
    H["g"] = G = [sc.tmp() for _ in range(3)]
    I(f"v_mul_u32_u24 v{V_T0}, 20, v{V_LANE}")
    I(f"v_or_b32 v{V_T0}, s{S_NC}, v{V_T0}")
    I(f"buffer_load_dwordx4 {q4(G[0])}, v{V_T0}, {sq(SRD_X)}, s{S_X} offen")
    I(f"buffer_load_dword v{G[2]}, v{V_T0}, {sq(SRD_X)}, s{S_X} offen offset:16")
    I(f"buffer_load_dwordx4 {q4(G[1])}, v{V_T0}, {sq(SRD_GW)}, 0 offen")
    I(f"buffer_load_dword v{G[2]+1}, v{V_T0}, {sq(SRD_GW)}, 0 offen offset:16")
    z_issue()
    for _ in range(7):
        sc.note()
    sc.note(("zl",))


def hook_zs():
    Z, G = H["z"], H["g"]
    sc.wait([("zl",)])
    spin_until(lambda: sentinel_check([s_ + j for s_ in Z for j in range(4)]), z_issue)
    for j in range(4):
        I(f"v_add_f32 v{Z[0]+j}, v{Z[0]+j}, v{Z[1]+j}")
        I(f"v_add_f32 v{Z[2]+j}, v{Z[2]+j}, v{Z[3]+j}")
    for j in range(4):
        I(f"v_add_f32 v{V_XF+j}, v{Z[0]+j}, v{Z[2]+j}")
    multi_reduce([V_XF + j for j in range(4)], [Z[0] + j for j in range(4)])
    t = [Z[1] + j for j in range(4)]
    I(f"v_mov_b32 v{V_G}, 0")
    for j in range(5):
        gx = G[0] + j if j < 4 else G[2]
        gw = G[1] + j if j < 4 else G[2] + 1
        I(f"v_lshlrev_b32 v{t[0]}, 16, v{gx}")
        I(f"v_and_b32 v{t[1]}, s{S_HI}, v{gx}")
        I(f"v_lshlrev_b32 v{t[2]}, 16, v{gw}")
        I(f"v_and_b32 v{t[3]}, s{S_HI}, v{gw}")
        I(f"v_mul_f32 v{t[0]}, v{t[0]}, v{t[2]}")
        I(f"v_mul_f32 v{t[1]}, v{t[1]}, v{t[3]}")
        I(f"v_cvt_pk_bf16_f32 v{t[0]}, v{t[0]}, v{t[1]}")
        I(f"v_lshlrev_b32 v{t[1]}, 16, v{t[0]}")
        I(f"v_and_b32 v{t[0]}, s{S_HI}, v{t[0]}")
        I(f"v_add_f32 v{V_G}, v{V_G}, v{t[1]}")
        I(f"v_add_f32 v{V_G}, v{V_G}, v{t[0]}")
    I(f"v_add_f32_dpp v{V_G}, v{V_G}, v{V_G} quad_perm:[1,0,3,2] row_mask:0xf bank_mask:0xf")
    I(f"v_add_f32_dpp v{V_G}, v{V_G}, v{V_G} quad_perm:[2,3,0,1] row_mask:0xf bank_mask:0xf")
    wave_allreduce("v_add_f32", V_G, t[0])
    rnd(V_G)
    I(f"v_mul_f32 v{V_G}, s{S_LOG2E}, v{V_G}")
    I(f"v_exp_f32 v{V_G}, -v{V_G}")
    I(f"v_add_f32 v{V_G}, 1.0, v{V_G}")
    I(f"v_rcp_f32 v{V_G}, v{V_G}")
    rnd(V_G)
    I(f"v_sub_f32 v{t[0]}, 1.0, v{V_G}")
    rnd(t[0])
    for j in range(4):
        rnd(V_XF + j)
    for j in range(4):
        I(f"v_mul_f32 v{V_XF+j}, v{t[0]}, v{V_XF+j}")
    for j in range(4):
        rnd(V_XF + j)
    sc.free += Z + G


def ml_issue():
    I(f"v_lshlrev_b32 v{V_T2}, 4, v{V_CC}")
    I(f"buffer_load_dwordx4 {q4(H['ml'])}, v{V_T2}, {sq(SRD_WS)}, s{S_MLR} offen{SC1}")


def hook_mli():
    H["ml"] = V_C
    ml_issue()
    sc.note(("ml",))


def hook_mlu():
    A = H["ml"]
    sc.wait([("ml",)])
    validated([A + 1, A + 3], ml_issue)
    I(f"v_max_f32_dpp v{V_T0}, v{A}, v{A} quad_perm:[1,0,3,2] row_mask:0xf bank_mask:0xf")
    I(f"v_max_f32_dpp v{V_T0}, v{V_T0}, v{V_T0} quad_perm:[2,3,0,1] row_mask:0xf bank_mask:0xf")
    I(f"v_max_f32_dpp v{V_T0}, v{V_T0}, v{V_T0} row_ror:4 row_mask:0xf bank_mask:0xf")
    I(f"v_sub_f32 v{A}, v{A}, v{V_T0}")
    I(f"v_sub_f32 v{V_F}, v{V_M}, v{V_T0}")
    I(f"v_mul_f32 v{A}, s{S_LOG2E}, v{A}")
    I(f"v_mul_f32 v{V_F}, s{S_LOG2E}, v{V_F}")
    I(f"v_exp_f32 v{A}, v{A}")
    I(f"v_exp_f32 v{V_F}, v{V_F}")
    I(f"v_mul_f32 v{A}, v{A}, v{A+2}")
    I(f"v_add_f32_dpp v{A}, v{A}, v{A} quad_perm:[1,0,3,2] row_mask:0xf bank_mask:0xf")
    I(f"v_add_f32_dpp v{A}, v{A}, v{A} quad_perm:[2,3,0,1] row_mask:0xf bank_mask:0xf")
    I(f"v_add_f32_dpp v{A}, v{A}, v{A} row_ror:4 row_mask:0xf bank_mask:0xf")
    I(f"v_rcp_f32 v{A}, v{A}")
    I(f"v_mul_f32 v{V_F}, v{V_F}, v{A}")


hooks = {}
for name, fn in (("T_CNT", hook_cnt), ("T_PART", hook_part), ("T_H", hook_h), ("T_ZB", hook_zb), ("T_ZL", hook_zl), ("T_ZS", hook_zs),
                 ("T_MLI", hook_mli), ("T_MLU", hook_mlu)):
    hooks.setdefault(P[name], []).append(fn)


def run_hooks(T):
    for fn in hooks.pop(T, []):
        fn()


for T in range(32):
    keys = [("k", 4 * T + t) for t in range(4)]
    sc.wait(keys)
    tl(T)
    for j in range(4):
        for t in range(4):
            a = sc.slot[keys[t]] + j
            if j == 0:
                I(f"v_dot2_f32_bf16 v{V_C+t}, v{a}, v{V_Q}, 0")
            else:
                I(f"v_dot2c_f32_bf16 v{V_C+t}, v{a}, v{V_Q+j}")
    for k in keys:
        sc.release(k)
    fill(1)
    I(f"v_add_f32_dpp v{V_Z01}, v{V_C}, v{V_C} row_ror:8 row_mask:0xf bank_mask:0x3")
    I(f"v_add_f32_dpp v{V_Z01}, v{V_C+1}, v{V_C+1} row_ror:8 row_mask:0xf bank_mask:0xc")
    I(f"v_add_f32_dpp v{V_Z23}, v{V_C+2}, v{V_C+2} row_ror:8 row_mask:0xf bank_mask:0x3")
    I(f"v_add_f32_dpp v{V_Z23}, v{V_C+3}, v{V_C+3} row_ror:8 row_mask:0xf bank_mask:0xc")
    fill(1)
    I(f"v_add_f32_dpp v{V_W}, v{V_Z01}, v{V_Z01} row_ror:12 row_mask:0xf bank_mask:0x5")
    I(f"v_add_f32_dpp v{V_W}, v{V_Z23}, v{V_Z23} row_ror:4 row_mask:0xf bank_mask:0xa")
    fill(2)
    if T > 0:
        post_score(T - 1)
    I(f"v_add_f32_dpp v{V_W}, v{V_W}, v{V_W} quad_perm:[2,3,0,1] row_mask:0xf bank_mask:0xf")
    fill()
    I(f"v_add_f32_dpp v{V_SC+T}, v{V_W}, v{V_W} quad_perm:[1,0,3,2] row_mask:0xf bank_mask:0xf")
    run_hooks(T)
post_score(31)
wave_allreduce("v_max_f32", V_M, V_T0)
I(f"v_mul_f32 v{V_NM}, s{S_LOG2E}, v{V_M}")
I(f"v_sub_f32 v{V_NM}, 0, v{V_NM}")
if not P["ST2"] and not P["TL"]:
    stamp(2)
I(f"v_mov_b32 v{V_C+2}, 0")
for T in range(0, 32, 2):
    for u in range(2):
        I(f"v_fma_f32 v{V_C+u}, v{V_SC+T+u}, s{S_LOG2E}, v{V_NM}")
    for u in range(2):
        I(f"v_exp_f32 v{V_C+u}, v{V_C+u}")
    for u in range(2):
        I(f"v_cvt_pk_bf16_f32 v{V_SC+T+u}, v{V_C+u}, v{V_C+u}")
    I(f"v_add_f32 v{V_L}, v{V_L}, v{V_C}")
    I(f"v_add_f32 v{V_C+2}, v{V_C+2}, v{V_C+1}")
I(f"v_add_f32 v{V_C+2}, v{V_L}, v{V_C+2}")
wave_allreduce("v_add_f32", V_C + 2, V_T0)
I(f"v_mov_b32 v{V_C}, v{V_M}")
I(f"v_mov_b32 v{V_C+1}, s{S_NON}")
I(f"v_mov_b32 v{V_C+3}, s{S_NON}")
I(f"buffer_store_dwordx4 {q4(V_C)}, off, {sq(SRD_WS)}, s{S_MLW}{SC1}")
sc.note()


def pv(T):
    keys = [("v", 4 * T + t) for t in range(4)]
    sc.wait(keys)
    tl(32 + T)
    Bs = [V_B0, V_B1]
    for t in range(2):
        bbuild(Bs[t], V_SC + T, 4 * BANK_OF_T[t])
    for t in range(4):
        c = "0" if (T == 0 and t == 0) else q4(V_ACC)
        I(f"v_mfma_f32_16x16x32_bf16 {q4(V_ACC)}, {q4(sc.slot[keys[t]])}, {q4(Bs[t&1])}, {c}")
        sc.release(keys[t])
        if t + 2 < 4:
            bbuild(Bs[t & 1], V_SC + T, 4 * BANK_OF_T[t + 2])
        else:
            fill(2)
    fill()


for T in range(32):
    if T >= P["WOSTART"]:
        state["side_due"] += P["WORATE"]
    pv(T)
    if T % 4 == 3:
        sc.free.append(V_SC + T - 3)
        fill()
    run_hooks(32 + T)
state["side_due"] = 99
fill()
assert not side and mp == len(main) and not hooks, (side, mp, hooks)
I(f"s_lshl_b32 s{S_T3}, s{S_W}, 9")
I(f"v_add_u32 v{V_T0}, s{S_T3}, v{V_LDSW}")
I(f"v_lshl_add_u32 v{V_T2}, v{V_CC}, 2, v{V_SIG}")
I(f"s_lshl_b32 s{S_T3}, s{S_W}, 5")
I(f"v_add_u32 v{V_T2}, s{S_T3}, v{V_T2}")
I(f"v_lshlrev_b32 v{V_T2}, 2, v{V_T2}")
for r in range(4):
    I(f"v_mul_f32 v{V_ACC+r}, v{V_F}, v{V_ACC+r}")
for r in range(4):
    I(f"ds_write_b32 v{V_T0}, v{V_ACC+r} offset:{L_OP+r*32}")
I("s_waitcnt lgkmcnt(0)")
I("s_barrier")
for w in range(4):
    I(f"ds_read_b32 v{V_C+w}, v{V_T2} offset:{L_OP+w*512}")
I(f"s_mul_i32 s{S_T3}, s{S_W}, 2560")
I(f"v_add_u32 v{V_T0}, s{S_T3}, v{V_LDSW}")
I(f"s_mul_i32 s{S_T3}, s{S_W}, 640")
I(f"v_add_u32 v{V_T1}, s{S_T3}, v{V_KV}")
I("s_waitcnt lgkmcnt(0)")
I(f"v_add_f32 v{V_C}, v{V_C}, v{V_C+1}")
I(f"v_add_f32 v{V_C+2}, v{V_C+2}, v{V_C+3}")
I(f"v_add_f32 v{V_C}, v{V_C}, v{V_C+2}")
I(f"v_cvt_pk_bf16_f32 v{V_NM}, v{V_C}, v{V_C}")
OACC = [V_Q, V_ACC, 28, 32, 36]
sc.wait([("wo", 7, 4)])
Bs = [V_B0, V_B1]
bbuild(Bs[0], V_NM, 0)
for i in range(8):
    if i + 1 < 8:
        bbuild(Bs[(i + 1) & 1], V_NM, i + 1)
    for c in range(5):
        a = OACC[c]
        cc = "0" if i == 0 else q4(a)
        I(f"v_mfma_f32_16x16x32_bf16 {q4(a)}, {q4(sc.slot[('wo', i, c)])}, {q4(Bs[i&1])}, {cc}")
for c in range(5):
    for r in range(4):
        I(f"ds_write_b32 v{V_T0}, v{OACC[c]+r} offset:{L_YP+c*512+r*32}")
VY = 64
I(f"v_lshrrev_b32 v{V_T2}, 2, v{V_LANE}")
I(f"v_and_b32 v{V_T3}, 3, v{V_LANE}")
I(f"v_mul_u32_u24 v{VY}, 2560, v{V_T2}")
I(f"v_lshl_add_u32 v{VY}, v{V_T3}, 4, v{VY}")
SOY = [S_K, S_V, S_WQ, S_WO]
for i in range(4):
    I(f"s_add_u32 s{SOY[i]}, s{S_YR}, {i*16*2560}")
I(f"v_cmp_gt_u32 vcc, 40, v{V_LANE}")
I("s_waitcnt lgkmcnt(0)")
I("s_barrier")
I(f"s_and_saveexec_b64 s[{S_SAVE}:{S_SAVE+1}], vcc")
R = POOL0
for w in range(4):
    I(f"ds_read_b128 {q4(R+4*w)}, v{V_T1} offset:{L_YP+w*2560}")
I("s_waitcnt lgkmcnt(2)")
for j in range(4):
    I(f"v_add_f32 v{R+j}, v{R+j}, v{R+4+j}")
I("s_waitcnt lgkmcnt(0)")
for j in range(4):
    I(f"v_add_f32 v{R+8+j}, v{R+8+j}, v{R+12+j}")
for j in range(4):
    I(f"v_add_f32 v{R+j}, v{R+j}, v{R+8+j}")
for j in range(4):
    I(f"v_min_u32 v{R+j}, -2, v{R+j}")
I(f"buffer_store_dwordx4 {q4(R)}, v{V_KV}, {sq(SRD_WS)}, s{S_YW} offen{SC1}")
I(f"s_mov_b64 exec, s[{S_SAVE}:{S_SAVE+1}]")
I(f"s_cmp_lg_u32 s{S_NC}, 0")
I("s_cbranch_scc1 L_fin")
if P["NOCONS"]:
    I("s_branch L_fin")
YR = 104
I(f"s_mov_b32 s{S_SPIN}, 0")
e.label("L_poll")
for i in range(4):
    I(f"buffer_load_dwordx4 {q4(YR+4*i)}, v{VY}, {sq(SRD_WS)}, s{SOY[i]} offen{SC1}")
I(f"s_add_u32 s{S_SPIN}, s{S_SPIN}, 1")
I("s_waitcnt vmcnt(0)")
I(f"v_max3_u32 v{V_T0}, v{YR}, v{YR+1}, v{YR+2}")
for j in range(3, 15, 2):
    I(f"v_max3_u32 v{V_T0}, v{YR+j}, v{YR+j+1}, v{V_T0}")
I(f"v_max_u32 v{V_T0}, v{YR+15}, v{V_T0}")
I(f"s_cmp_gt_u32 s{S_SPIN}, {SPINMAX}")
I("s_cbranch_scc1 L_poll_done")
I(f"v_cmp_eq_u32 vcc, -1, v{V_T0}")
I("s_cbranch_vccz L_poll_done")
if P["SLEEP"]:
    I(f"s_sleep {P['SLEEP']}")
I("s_branch L_poll")
e.label("L_poll_done")
AY = 68
for j in range(4):
    I(f"v_add_f32 v{YR+j}, v{YR+j}, v{YR+4+j}")
    I(f"v_add_f32 v{YR+8+j}, v{YR+8+j}, v{YR+12+j}")
for j in range(4):
    I(f"v_add_f32 v{AY+j}, v{YR+j}, v{YR+8+j}")
multi_reduce([AY + j for j in range(4)], [72 + j for j in range(4)])
for j in range(4):
    rnd(AY + j)
for j in range(4):
    I(f"v_mul_f32 v{AY+j}, v{V_G}, v{AY+j}")
for j in range(4):
    rnd(AY + j)
for j in range(4):
    I(f"v_add_f32 v{AY+j}, v{AY+j}, v{V_XF+j}")
I(f"v_cvt_pk_bf16_f32 v22, v{AY}, v{AY+1}")
I(f"v_cvt_pk_bf16_f32 v23, v{AY+2}, v{AY+3}")
I(f"v_lshlrev_b32 v24, 3, v{V_LANE}")
I(f"v_cmp_gt_u32 vcc, 4, v{V_LANE}")
I(f"s_and_saveexec_b64 s[{S_SAVE}:{S_SAVE+1}], vcc")
I(f"buffer_store_dwordx2 v[22:23], v24, {sq(SRD_OUT)}, s{S_OUTO} offen")
e.label("L_fin")
if P["STAMP"]:
    I("s_waitcnt vmcnt(0)")
    stamp(3)
    stamp_store()
e.raw("L_end:")
I("s_endpgm")

e.raw('.section .rodata,"a"')
e.raw(".p2align 6")
e.raw(f".amdhsa_kernel {KA}")
e.raw("  .amdhsa_next_free_vgpr 256")
e.raw("  .amdhsa_next_free_sgpr 102")
e.raw("  .amdhsa_accum_offset 256")
e.raw("  .amdhsa_group_segment_fixed_size 0")
e.raw("  .amdhsa_kernarg_size 104")
e.raw("  .amdhsa_user_sgpr_count 2")
e.raw("  .amdhsa_user_sgpr_kernarg_segment_ptr 1")
e.raw("  .amdhsa_system_sgpr_workgroup_id_x 1")
e.raw("  .amdhsa_float_denorm_mode_32 3")
e.raw(".end_amdhsa_kernel")
sys.stdout.write(e.text())
sys.stderr.write(f"nops: {e.nops}\n")
```

```python
import re

TRANS = ("v_exp_f32", "v_log_f32", "v_rcp_f32", "v_rsq_f32", "v_sqrt_f32", "v_sin_f32", "v_cos_f32")


def regs_of(tok):
    tok = tok.strip()
    tok = tok.lstrip("-")
    m = re.fullmatch(r"abs\((.*)\)", tok)
    if m:
        tok = m.group(1)
    m = re.fullmatch(r"([vs])(\d+)", tok)
    if m:
        return [(m.group(1), int(m.group(2)))]
    m = re.fullmatch(r"([vs])\[(\d+):(\d+)\]", tok)
    if m:
        return [(m.group(1), i) for i in range(int(m.group(2)), int(m.group(3)) + 1)]
    if tok == "vcc":
        return [("s", 106), ("s", 107)]
    if tok == "exec":
        return [("s", 126), ("s", 127)]
    if tok == "m0":
        return [("s", 124)]
    return []


class Em:
    def __init__(self):
        self.lines = []
        self.t = 0
        self.valu_w = {}
        self.mfma_w = {}
        self.mfma_c = {}
        self.store_data = {}
        self.nops = 0

    def raw(self, s):
        self.lines.append(s)

    def label(self, name):
        self.nop(10)
        self.lines.append(name + ":")

    def skip_label(self, name, t_branch):
        self.lines.append(name + ":")
        self.t = t_branch

    def nop(self, n):
        while n > 0:
            k = min(n, 16)
            self.lines.append(f"  s_nop {k-1}")
            self.t += k
            self.nops += k
            n -= k

    def comment(self, s):
        self.lines.append("  ; " + s)

    def I(self, text):
        text = text.strip()
        mn, _, rest = text.partition(" ")
        ops = [o.strip() for o in rest.split(",")] if rest else []
        mods = ""
        if ops:
            joined = []
            depth = 0
            cur = ""
            for ch in rest:
                if ch == "[":
                    depth += 1
                elif ch == "]":
                    depth -= 1
                if ch == "," and depth == 0:
                    joined.append(cur.strip())
                    cur = ""
                else:
                    cur += ch
            joined.append(cur.strip())
            ops = joined
            last = ops[-1].split(None, 1)
            if len(last) == 2:
                ops[-1] = last[0]
                mods = last[1]
        need = 0

        def req(tprod, n):
            nonlocal need
            need = max(need, tprod + 1 + n)

        is_mfma = mn.startswith("v_mfma")
        is_valu = mn.startswith("v_") and not is_mfma
        is_vmem = mn.startswith("buffer_") or mn.startswith("global_")
        is_ds = mn.startswith("ds_")
        reads, writes = [], []
        dpp_reads = []
        if is_mfma:
            D, A, B, C = (regs_of(o) for o in ops[:4])
            for r in A + B + C:
                if r in self.valu_w:
                    req(self.valu_w[r][0], 2)
            for r in A + B:
                if r in self.mfma_w:
                    req(self.mfma_w[r][0], 8)
            for r in C:
                if r in self.mfma_w and self.mfma_w[r][1] != tuple(C):
                    req(self.mfma_w[r][0], 6)
            for r in D:
                if r in self.mfma_w and self.mfma_w[r][1] != tuple(D):
                    req(self.mfma_w[r][0], 8)
        elif is_valu:
            base = mn.replace("_dpp", "").replace("_e32", "").replace("_e64", "")
            if base.startswith("v_permlane"):
                writes = regs_of(ops[0]) + regs_of(ops[1])
                reads = list(writes)
                for r in reads:
                    if r in self.valu_w:
                        req(self.valu_w[r][0], 2)
            else:
                writes = regs_of(ops[0])
                for o in ops[1:]:
                    reads += regs_of(o)
                if base in ("v_dot2c_f32_bf16", "v_fmac_f32") or mn.endswith("_dpp"):
                    reads += writes
                if base == "v_cndmask_b32" and len(ops) == 3:
                    reads += regs_of("vcc")
            if mn.endswith("_dpp"):
                for r in regs_of(ops[1]):
                    if r in self.valu_w:
                        req(self.valu_w[r][0], 2)
            for r in reads:
                if r in self.valu_w:
                    tp, pm = self.valu_w[r]
                    if pm.startswith("v_dot"):
                        isC = (pm == base) and (
                            (base == "v_dot2c_f32_bf16" and r in writes and r not in regs_of(ops[1]) + regs_of(ops[2]))
                            or (base == "v_dot2_f32_bf16" and r in regs_of(ops[3]) and r not in regs_of(ops[1]) + regs_of(ops[2])))
                        if not isC:
                            req(tp, 3)
                    if pm in TRANS and base not in TRANS:
                        req(tp, 1)
                    if r[0] == "s":
                        req(tp, 4 if base in ("v_readlane_b32", "v_writelane_b32") else 2)
                    if base in ("v_readfirstlane_b32", "v_readlane_b32") and r[0] == "v":
                        req(tp, 1)
                if r in self.mfma_w:
                    req(self.mfma_w[r][0], 8)
            for r in writes:
                if r in self.mfma_w:
                    req(self.mfma_w[r][0], 8)
                if r in self.mfma_c:
                    req(self.mfma_c[r], 3)
                if r in self.store_data:
                    req(self.store_data[r], 2)
                if r in self.valu_w and self.valu_w[r][1].startswith("v_dot") and self.valu_w[r][1] != base:
                    req(self.valu_w[r][0], 3)
        elif is_vmem or is_ds:
            allr = []
            for o in ops:
                allr += regs_of(o)
            for r in allr:
                if r[0] == "s" and r in self.valu_w:
                    req(self.valu_w[r][0], 5)
                if r in self.mfma_w:
                    req(self.mfma_w[r][0], 8)
                if r in self.valu_w and self.valu_w[r][1].startswith("v_dot"):
                    req(self.valu_w[r][0], 3)
                if r in self.valu_w and self.valu_w[r][1] in TRANS:
                    req(self.valu_w[r][0], 1)
            isload = ("load" in mn) or mn.startswith("ds_read")
            if isload:
                for r in regs_of(ops[0]):
                    if r in self.store_data:
                        req(self.store_data[r], 1)
                    if r in self.mfma_c:
                        req(self.mfma_c[r], 3)
        else:
            for o in ops:
                for r in regs_of(o):
                    if r[0] == "s" and r in self.valu_w:
                        req(self.valu_w[r][0], 1)
        if need > self.t:
            self.nop(need - self.t)
        if is_mfma:
            for r in D:
                self.mfma_w[r] = (self.t, tuple(D))
                self.valu_w.pop(r, None)
            for r in C:
                self.mfma_c[r] = self.t
        elif is_valu:
            for r in writes:
                self.valu_w[r] = (self.t, base)
                self.mfma_w.pop(r, None)
        elif is_vmem or is_ds:
            if ("load" in mn) or mn.startswith("ds_read"):
                for r in regs_of(ops[0]):
                    self.valu_w.pop(r, None)
                    self.mfma_w.pop(r, None)
            if "store" in mn and ("x4" in mn or "x3" in mn):
                for r in regs_of(ops[0]):
                    self.store_data[r] = self.t
        else:
            if ops and mn.startswith("s_") and not mn.startswith("s_cmp") and not mn.startswith("s_cbranch") \
                    and not mn.startswith("s_waitcnt") and not mn.startswith("s_nop"):
                for r in regs_of(ops[0]):
                    self.valu_w.pop(r, None)
        self.lines.append("  " + text)
        if mn == "s_nop":
            self.t += int(ops[0]) + 1
        else:
            self.t += 1

    def text(self):
        return "\n".join(self.lines) + "\n"
```

```python
import sys
from em import Em

P = dict(D=12, D1=12, NT="nt", STAMP=0, TL=0, ST2=0, ST3=0,
         PGU=12, PC=44, G1=2, T_D=8, T_H=16, T_MLU=50,
         WOSTART=1, WORATE=2, SLEEP=1, CDLY=30, PRIO=3, U2=121, MASKPOLL=1, CT=0, QFIRST=0, FDLY=0, FSLP=4, QSLP=1, QPIPE=4, QSP=12, XF=4, XN=1, SPLIT=1, HNON=0, AD0=3, ADV=4,
         PK=0, PA=0, PS=100, PT0=12, PT1=63, RK=545, RV1=630, RV2=550, RX=800, PK2=0, PD2=100, PH=0, PG=0, PX0=6, PHW=0, PHG=0, GL=3)
for a in sys.argv[1:]:
    k, v = a.split("=")
    assert k in P, k
    P[k] = v if not v.lstrip("-").isdigit() else int(v)

KN = "gated_mix__mha_block_cached__glu_gated_bilinear__decode"
KA = KN + "_kernel"
LOG2E = "0x3fb8aa3b"
SCALE = "0x3db504f3"
WSO = 0x300000 if P["STAMP"] else 0
ML_OFF = WSO
Y_OFF = WSO + 0x10000
Z_OFF = WSO + 0xC0000
FP_OFF = WSO + 0x110000
QP_OFF = WSO + 0x150000
WS_BYTES = WSO + 0x1A0000
FPROW = 1728 * 4
BIG = "0x40000000"
NMUL = "0x9e3779b1"
SPINMAX = 20000
LSPINMAX = 4000000
U2 = P["U2"]
assert U2 + 135 <= 256
L_FLAG = 0
CNT_Q, CNT_F, CNT_Z, CNT_ML, QRDY, HRDY, FRDY, NONW = 0, 4, 8, 12, 16, 20, 24, 28
L_F, L_ML, L_Q, L_H, L_OP, L_QX, L_S1 = 32, 64, 256, 512, 2048, 4096, 12288
L_ZP = L_QX
L_YP = L_QX
LDS_BYTES = L_S1 + 8192


def fl(x):
    return "" if x in ("0", 0, "") else " " + str(x).replace("+", " ")


NT = fl(P["NT"])
e = Em()
I = e.I

S_W = 3
SRD_GU, SRD_D, SRD_DBG, SRD_GW, SRD_OUT = 4, 8, 12, 16, 20
SRD_K, SRD_V, SRD_WQ, SRD_WO, SRD_X, SRD_WS = 44, 48, 52, 56, 60, 64
S_K, S_V, S_WQ, S_WO, S_X, S_REC, S_T0, S_T1, S_T2, S_T3 = 68, 69, 70, 71, 72, 73, 74, 75, 76, 77
S_LOG2E, S_SCALE, S_HI, S_B = 78, 79, 80, 81
S_SAVE = 82
S_ST = 84
S_GU, S_D0, S_H, S_S, S_YW, S_SPIN = 92, 93, 94, 95, 96, 97
S_T4, S_T5 = 98, 99
S_NON = 100
S_QPW, S_QPR, S_FPW, S_FPR, S_ZW, S_ZR, S_MLW, S_YR, S_OUTO, S_NC, S_N2 = 44, 45, 46, 47, 48, 49, 50, 51, 52, 53, 54
S_TAG = 56
S_EX = 24
S_STAG = 24
S_ORG, S_PT = 28, 30
S_RB, S_CB = 7, 8
S_XN = 12
S_P0, S_P1, S_M8 = 4, 5, 6

V_KV, V_WQ, V_WO = 1, 2, 3
V_MASK = 4
V_Q = 8
V_B0, V_B1 = 12, 16
V_ACC = 20
V_M, V_L, V_NM = 24, 25, 26
V_TL = 27
V_GUO, V_UU = 28, 29
V_C = 30
V_Z01, V_Z23, V_W, V_R1, V_CC, V_DO = 34, 35, 36, 37, 38, 39
V_F = V_Z01
V_LANE, V_T0, V_SIG, V_RHO, V_T1, V_T2, V_T3, V_LDSW = 40, 41, 42, 43, 44, 45, 46, 47
V_SC = 48
V_XQ, V_XF = V_SC + 24, V_SC + 28
POOL0 = 80


def srd(base, plo, nbytes):
    I(f"s_mov_b32 s{base}, s{plo}")
    I(f"s_mov_b32 s{base+1}, s{plo+1}")
    I(f"s_mov_b32 s{base+2}, {nbytes}")
    I(f"s_mov_b32 s{base+3}, 0x00020000")


def q4(b):
    return f"v[{b}:{b+3}]"


def q2(b):
    return f"v[{b}:{b+1}]"


def sq(b):
    return f"s[{b}:{b+3}]"


NOM = []
for T in range(64):
    if T <= 31:
        t = 14300 + P["RK"] * (T - 16)
    elif T == 32:
        t = NOM[-1] + P["RX"]
    elif T <= 52:
        t = NOM[-1] + P["RV1"]
    else:
        t = NOM[-1] + P["RV2"]
    NOM.append(t)
NOM = [(t * P["PS"] // 100 + P["PA"]) // 10 for t in NOM]


gate_on = [False]


def gate(X):
    if not (P["PG"] and gate_on[0] and X >= P["PX0"]):
        return
    sk, lp = lab("gk"), lab("gl")
    e.lines.append(lp + ":")
    I(f"s_memrealtime s[{S_PT}:{S_PT+1}]")
    I("s_waitcnt lgkmcnt(0)")
    I(f"s_sub_u32 s{S_ORG+1}, s{S_PT}, s{S_ORG}")
    I(f"s_cmp_lt_u32 s{S_ORG+1}, {NOM[X-P['GL']]}")
    I(f"s_cbranch_scc0 {sk}")
    tb = e.t
    I("s_sleep 1")
    I(f"s_branch {lp}")
    e.skip_label(sk, tb)


class Sched:
    def __init__(self, free):
        self.free = list(free)
        self.count = 0
        self.done = 0
        self.idx = {}
        self.slot = {}

    def note(self, key=None):
        if key is not None:
            self.idx[key] = self.count
        self.count += 1

    def take(self, key):
        s = self.free.pop(0)
        self.slot[key] = s
        self.idx[key] = self.count
        self.count += 1
        return s

    def wait(self, keys):
        need = max(self.idx[k] for k in keys) + 1
        if need > self.done:
            n = self.count - need
            assert n <= 63
            I(f"s_waitcnt vmcnt({n})")
            self.done = need

    def release(self, key):
        self.free.append(self.slot.pop(key))

    def tmp(self):
        return self.free.pop()


def bbuild(B, src, bc):
    for i in range(4):
        I(f"v_and_b32_dpp v{B+i}, v{src}, v{V_MASK+i} row_newbcast:{bc} row_mask:0xf bank_mask:0xf")


def xrow_reduce(op, v, tmp):
    I(f"v_mov_b32 v{tmp}, v{v}")
    I(f"v_permlane16_swap_b32 v{v}, v{tmp}")
    I(f"{op} v{v}, v{v}, v{tmp}")
    I(f"v_mov_b32 v{tmp}, v{v}")
    I(f"v_permlane32_swap_b32 v{v}, v{tmp}")
    I(f"{op} v{v}, v{v}, v{tmp}")


def wave_allreduce(op, v, tmp):
    I(f"{op}_dpp v{v}, v{v}, v{v} row_ror:4 row_mask:0xf bank_mask:0xf")
    I(f"{op}_dpp v{v}, v{v}, v{v} row_ror:8 row_mask:0xf bank_mask:0xf")
    xrow_reduce(op, v, tmp)


def multi_reduce(regs, tmps):
    for ror in (4, 8):
        for r in regs:
            I(f"v_add_f32_dpp v{r}, v{r}, v{r} row_ror:{ror} row_mask:0xf bank_mask:0xf")
    for sw in ("v_permlane16_swap_b32", "v_permlane32_swap_b32"):
        for r, t in zip(regs, tmps):
            I(f"v_mov_b32 v{t}, v{r}")
        for r, t in zip(regs, tmps):
            I(f"{sw} v{r}, v{t}")
        for r, t in zip(regs, tmps):
            I(f"v_add_f32 v{r}, v{r}, v{t}")


def rnd(v):
    I(f"v_cvt_pk_bf16_f32 v{v}, v{v}, v{v}")
    I(f"v_and_b32 v{v}, s{S_HI}, v{v}")


def stamp(i):
    if P["STAMP"]:
        I(f"s_memrealtime s[{S_ST+2*i}:{S_ST+2*i+1}]")


tl_state = dict(pend=None)


def tl(T):
    if not P["TL"]:
        return
    if tl_state["pend"] is not None:
        I("s_waitcnt lgkmcnt(0)")
        I(f"v_writelane_b32 v{V_TL}, s{S_ST+4}, {tl_state['pend']}")
    tl_state["pend"] = T
    if T is not None:
        I(f"s_memrealtime s[{S_ST+4}:{S_ST+5}]")


def stamp_store():
    if P["TL"]:
        I("s_mov_b64 exec, -1")
        tl(None)
        I(f"s_lshl_b32 s{S_T2}, s2, 2")
        I(f"s_add_u32 s{S_T2}, s{S_T2}, s{S_W}")
        I(f"s_lshl_b32 s{S_T2}, s{S_T2}, 8")
        I(f"s_add_u32 s{S_T2}, s{S_T2}, 0x100000")
        I(f"v_lshlrev_b32 v108, 2, v{V_LANE}")
        I(f"buffer_store_dword v{V_TL}, v108, {sq(SRD_WS)}, s{S_T2} offen")
    I("s_mov_b64 exec, -1")
    I("s_waitcnt lgkmcnt(0)")
    I(f"s_getreg_b32 s{S_T0}, hwreg(HW_REG_HW_ID)")
    I(f"s_getreg_b32 s{S_T1}, hwreg(HW_REG_XCC_ID)")
    I(f"s_mul_i32 s{S_T2}, s2, 128")
    I(f"s_lshl_b32 s{S_T3}, s{S_W}, 5")
    I(f"s_add_u32 s{S_T2}, s{S_T2}, s{S_T3}")
    for j, s in enumerate([S_ST, S_ST + 1, S_ST + 6, S_ST + 7, S_T0, S_T1, S_ST + 2, S_ST + 4]):
        I(f"v_mov_b32 v{100+j}, s{s}")
    I("v_mov_b32 v108, 0")
    I("s_mov_b64 exec, 1")
    I(f"buffer_store_dwordx4 v[100:103], v108, {sq(SRD_WS)}, s{S_T2} offen sc1")
    I(f"buffer_store_dwordx4 v[104:107], v108, {sq(SRD_WS)}, s{S_T2} offen offset:16 sc1")


V_CT = 110
ct_names = []


def ct(name):
    if not P["CT"]:
        return
    I(f"s_memrealtime s[{S_ST+4}:{S_ST+5}]")
    I("s_waitcnt lgkmcnt(0)")
    I(f"v_writelane_b32 v{V_CT}, s{S_ST+4}, {len(ct_names)}")
    ct_names.append(name)


def ct_store():
    if not P["CT"]:
        return
    I("s_mov_b64 exec, -1")
    I(f"s_lshl_b32 s{S_T2}, s2, 8")
    I(f"s_add_u32 s{S_T2}, s{S_T2}, 0x180000")
    I(f"v_lshlrev_b32 v108, 2, v{V_LANE}")
    I(f"buffer_store_dword v{V_CT}, v108, {sq(SRD_WS)}, s{S_T2} offen")


lab_n = [0]


def lab(p):
    lab_n[0] += 1
    return f"L_{p}{lab_n[0]}"


def lds_signal(off, vz, v1):
    I(f"v_mov_b32 v{vz}, 0")
    I(f"v_mov_b32 v{v1}, 1")
    I("s_mov_b64 exec, 1")
    I(f"ds_add_u32 v{vz}, v{v1} offset:{L_FLAG+off}")
    I("s_mov_b64 exec, -1")


def lds_wait(off, target, vz, vt):
    ok, sp = lab("ok"), lab("sp")
    I(f"v_mov_b32 v{vz}, 0")
    I(f"s_mov_b32 s{S_SPIN}, 0")
    e.label(sp)
    I(f"ds_read_b32 v{vt}, v{vz} offset:{L_FLAG+off}")
    I(f"s_add_u32 s{S_SPIN}, s{S_SPIN}, 1")
    I("s_waitcnt lgkmcnt(0)")
    I(f"v_cmp_le_u32 vcc, {target}, v{vt}")
    I(f"s_cbranch_vccnz {ok}")
    I(f"s_cmp_gt_u32 s{S_SPIN}, {LSPINMAX}")
    I(f"s_cbranch_scc1 {ok}")
    I("s_sleep 1")
    I(f"s_branch {sp}")
    e.label(ok)


def mem_spin(issue, check, sleep):
    ok, sp = lab("ok"), lab("sp")
    I(f"s_mov_b32 s{S_SPIN}, 0")
    e.label(sp)
    issue()
    I(f"s_add_u32 s{S_SPIN}, s{S_SPIN}, 1")
    I("s_waitcnt vmcnt(0)")
    check()
    I(f"s_cbranch_vccz {ok}")
    I(f"s_cmp_gt_u32 s{S_SPIN}, {SPINMAX}")
    I(f"s_cbranch_scc1 {ok}")
    I(f"s_sleep {sleep}")
    I(f"s_branch {sp}")
    e.label(ok)


def tag_poll(quads, issue, init, tmps, sleep, exp=None):
    n = len(quads)
    ok, sp = lab("ok"), lab("sp")
    for i in range(n):
        I(f"s_mov_b64 s[{S_EX+2*i}:{S_EX+2*i+1}], {init[i]}")
    I(f"s_mov_b32 s{S_SPIN}, 0")
    e.label(sp)
    for i in range(n):
        I(f"s_mov_b64 exec, s[{S_EX+2*i}:{S_EX+2*i+1}]")
        issue(i)
    I("s_mov_b64 exec, -1")
    I(f"s_add_u32 s{S_SPIN}, s{S_SPIN}, 1")
    for i, q in enumerate(quads):
        I(f"s_waitcnt vmcnt({n-1-i})")
        I(f"v_perm_b32 v{tmps+2*i}, v{q+1}, v{q}, s{S_P0}")
        I(f"v_perm_b32 v{tmps+2*i+1}, v{q+3}, v{q+2}, s{S_P1}")
    for i in range(n):
        I(f"v_or_b32 v{tmps+2*i}, v{tmps+2*i}, v{tmps+2*i+1}")
    for i in range(n):
        I(f"s_mov_b64 exec, s[{S_EX+2*i}:{S_EX+2*i+1}]")
        I(f"v_cmp_ne_u32 s[{S_EX+2*i}:{S_EX+2*i+1}], {exp[i] if exp else f's{S_NON}'}, v{tmps+2*i}")
    I("s_mov_b64 exec, -1")
    I(f"s_or_b64 s[{S_T0}:{S_T1}], s[{S_EX}:{S_EX+1}], s[{S_EX+2}:{S_EX+3}]")
    for i in range(2, n):
        I(f"s_or_b64 s[{S_T0}:{S_T1}], s[{S_T0}:{S_T1}], s[{S_EX+2*i}:{S_EX+2*i+1}]")
    I(f"s_cbranch_scc0 {ok}")
    I(f"s_cmp_gt_u32 s{S_SPIN}, {SPINMAX}")
    I(f"s_cbranch_scc1 {ok}")
    if sleep:
        I(f"s_sleep {sleep}")
    I(f"s_branch {sp}")
    e.label(ok)
    for q in quads:
        for j in range(4):
            I(f"v_and_b32 v{q+j}, s{S_M8}, v{q+j}")


def tag_put(regs, vmask, stag):
    for r in regs:
        I(f"v_add_u32 v{r}, 0x80, v{r}")
    for j, r in enumerate(regs):
        I(f"v_and_or_b32 v{r}, v{r}, v{vmask}, s{stag+(j&3)}")


for h in (f"; @launch grid=(256,1,1) block=(320,1,1) lds={LDS_BYTES}",
          '.amdgcn_target "amdgcn-amd-amdhsa--gfx950"', ".text", f".globl {KA}", ".p2align 8",
          f".type {KA},@function", f"{KA}:"):
    e.raw(h)

I("s_cmp_ge_u32 s2, 256")
I("s_cbranch_scc1 L_end")
stamp(0)
I(f"s_memrealtime s[{S_NON}:{S_NON+1}]")
I("s_load_dwordx16 s[16:31], s[0:1], 0")
I("s_load_dwordx8 s[32:39], s[0:1], 64")
I("s_load_dwordx2 s[40:41], s[0:1], 96")
I(f"v_and_b32 v{V_LANE}, 63, v0")
I(f"v_lshrrev_b32 v{V_T0}, 6, v0")
I(f"v_readfirstlane_b32 s{S_W}, v{V_T0}")
I(f"v_lshrrev_b32 v{V_SIG}, 4, v{V_LANE}")
I(f"v_and_b32 v{V_RHO}, 15, v{V_LANE}")
I(f"v_lshlrev_b32 v{V_KV}, 4, v{V_LANE}")
I(f"s_and_b32 s{S_T0}, s2, 7")
I(f"s_lshr_b32 s{S_T1}, s2, 3")
I(f"s_and_b32 s{S_T2}, s{S_T1}, 3")
I(f"s_lshl_b32 s{S_T0}, s{S_T0}, 2")
I(f"s_add_u32 s{S_H}, s{S_T0}, s{S_T2}")
I(f"s_lshr_b32 s{S_T1}, s{S_T1}, 2")
I(f"s_lshr_b32 s{S_B}, s{S_T1}, 1")
I(f"s_and_b32 s{S_S}, s{S_T1}, 1")
I(f"s_lshl_b32 s{S_REC}, s{S_B}, 5")
I(f"s_add_u32 s{S_REC}, s{S_REC}, s{S_H}")
I(f"s_lshl_b32 s{S_REC}, s{S_REC}, 1")
I(f"s_add_u32 s{S_REC}, s{S_REC}, s{S_S}")
I(f"s_mov_b32 s{S_LOG2E}, {LOG2E}")
I(f"s_mov_b32 s{S_HI}, 0xffff0000")
I(f"s_cmp_eq_u32 s{S_W}, 4")
I("s_cbranch_scc1 L_comm")

I(f"v_and_b32 v{V_CC}, 7, v{V_LANE}")
I(f"v_lshrrev_b32 v{V_UU}, 3, v{V_RHO}")
I(f"v_lshl_add_u32 v{V_T0}, v{V_UU}, 2, v{V_SIG}")
I(f"v_lshlrev_b32 v{V_WQ}, 13, v{V_T0}")
I(f"v_lshl_add_u32 v{V_WQ}, v{V_CC}, 4, v{V_WQ}")
I(f"v_mul_u32_u24 v{V_GUO}, 3456, v{V_T0}")
I(f"v_lshl_add_u32 v{V_GUO}, v{V_CC}, 4, v{V_GUO}")
I(f"v_lshl_add_u32 v{V_T1}, v{V_CC}, 3, v{V_T0}")
I(f"v_lshlrev_b32 v{V_T1}, 1, v{V_T1}")
I(f"s_mul_i32 s{S_X}, s{S_B}, 160")
I(f"s_mul_i32 s{S_T4}, s{S_W}, 40")
I(f"s_add_u32 s{S_X}, s{S_X}, s{S_T4}")
I(f"s_lshl_b32 s{S_WQ}, s{S_X}, 13")
I(f"s_lshl_b32 s{S_T3}, s{S_H}, 8")
I(f"s_add_u32 s{S_WQ}, s{S_WQ}, s{S_T3}")
I(f"s_lshl_b32 s{S_T3}, s{S_S}, 7")
I(f"s_add_u32 s{S_WQ}, s{S_WQ}, s{S_T3}")
I(f"s_lshl_b32 s{S_X}, s{S_X}, 1")
I(f"s_lshl_b32 s{S_K}, s{S_REC}, 19")
I(f"s_lshl_b32 s{S_T3}, s{S_W}, 12")
I(f"s_add_u32 s{S_K}, s{S_K}, s{S_T3}")
I(f"s_mov_b32 s{S_V}, s{S_K}")
I("s_waitcnt lgkmcnt(0)")
sc = Sched([POOL0 + 4 * i for i in range((256 - POOL0) // 4)])
srd(SRD_X, 16, 5120)
srd(SRD_WQ, 22, 5242880)
for b in range(4):
    I(f"buffer_load_ushort v{V_XQ+b}, v{V_T1}, {sq(SRD_X)}, s{S_X} offen offset:{b*1280}")
    sc.note(("x", b))
srd(SRD_K, 18, 0x8000000)


def issue(key):
    kind = key[0]
    s = sc.take(key)
    if kind == "wq":
        I(f"buffer_load_dwordx4 {q4(s)}, v{V_WQ}, {sq(SRD_WQ)}, s{S_WQ} offen{NT}")
        if key[1] < 4:
            I(f"s_add_u32 s{S_WQ}, s{S_WQ}, 65536")
    elif kind in ("k", "v"):
        srdn, sreg = (SRD_K, S_K) if kind == "k" else (SRD_V, S_V)
        t = key[1] & 3
        if t == 0:
            gate(key[1] // 4 + (32 if kind == "v" else 0))
        I(f"buffer_load_dwordx4 {q4(s)}, v{V_KV}, {sq(srdn)}, s{sreg} offen offset:{t*1024}{NT}")
        if t == 3 and key[1] < 127:
            I(f"s_add_u32 s{sreg}, s{sreg}, 16384")
    elif kind == "wo":
        i, c = key[1], key[2]
        I(f"buffer_load_dwordx4 {q4(s)}, v{V_WO}, {sq(SRD_WO)}, s{S_WO} offen offset:{c*256}{NT}")
        if c == 4 and i < 7:
            I(f"s_add_u32 s{S_WO}, s{S_WO}, 5120")
    elif kind == "gu":
        I(f"buffer_load_dwordx4 {q4(s)}, v{V_GUO}, {sq(SRD_GU)}, s{S_GU} offen{NT}")
        if key[1] < 4:
            I(f"s_add_u32 s{S_GU}, s{S_GU}, {8*3456}")
    elif kind == "d":
        I(f"buffer_load_dwordx4 {q4(s)}, v{V_DO}, {sq(SRD_D)}, s{S_D0} offen{NT}")
        if key[1] < 3:
            I(f"s_add_u32 s{S_D0}, s{S_D0}, 5120")


main = [("wq", i) for i in range(5)]
main += [("k", n) for n in range(128)]
main += [("v", n) for n in range(128)]
side = [("wo", i, c) for i in range(8) for c in range(5)]
mp = 0
state = dict(D=P["D1"], side_due=0, reserve=0)


def main_held():
    return sum(1 for k in sc.slot if k[0] in ("k", "v"))


def main_inflight():
    return sum(1 for k in main[:mp] if sc.idx[k] >= sc.done)


def fill(maxn=99):
    global mp
    n = 0
    while mp < len(main) and main_inflight() < state["D"] and n < maxn:
        if len(sc.free) > state["reserve"]:
            issue(main[mp])
        else:
            break
        mp += 1
        n += 1
    while side and state["side_due"] > 0 and n < maxn:
        rem = len(main) - mp
        if len(sc.free) > state["reserve"] + max(0, min(rem, state["D"]) - main_held()):
            issue(side.pop(0))
            state["side_due"] -= 1
            n += 1
        else:
            break
    return n


def advance(upto):
    while mp < upto and len(sc.free) > state["reserve"]:
        pend = [k for k in main[:mp] if sc.idx[k] >= sc.done]
        if len(pend) >= state["D"]:
            sc.wait(pend[:min(P["G1"], len(pend))])
        fill(min(P["G1"], upto - mp))


def unit1():
    I(f"s_mul_i32 s{S_T0}, s2, 1214")
    I(f"s_lshr_b32 s{S_T0}, s{S_T0}, 15")
    I(f"s_mul_i32 s{S_T1}, s{S_T0}, 27")
    I(f"s_sub_u32 s{S_T1}, s2, s{S_T1}")


def unit2():
    I(f"s_sub_u32 s{S_T2}, s2, {U2}")
    I(f"s_cmp_lt_u32 s{S_T2}, 135")
    I(f"s_cselect_b32 s{S_T1}, s{S_T2}, 0")
    I(f"s_cselect_b32 s{S_T2}, 0, {BIG}")
    I(f"s_mul_i32 s{S_T0}, s{S_T1}, 205")
    I(f"s_lshr_b32 s{S_T0}, s{S_T0}, 10")
    I(f"s_mul_i32 s{S_T3}, s{S_T0}, 5")
    I(f"s_sub_u32 s{S_T1}, s{S_T1}, s{S_T3}")


fill()
unit1()
I(f"s_and_b32 s{S_T2}, s{S_T0}, 1")
I(f"s_cmp_eq_u32 s{S_T2}, 0")
I(f"s_cselect_b32 s{SRD_GU}, s28, s30")
I(f"s_cselect_b32 s{SRD_GU+1}, s29, s31")
I(f"s_mov_b32 s{SRD_GU+2}, 2211840")
I(f"s_mov_b32 s{SRD_GU+3}, 0x00020000")
I(f"s_lshr_b32 s{S_T0}, s{S_T0}, 1")
I(f"s_mul_i32 s{S_T0}, s{S_T0}, 160")
I(f"s_add_u32 s{S_T0}, s{S_T0}, s{S_T4}")
I(f"s_mul_i32 s{S_GU}, s{S_T0}, 3456")
I(f"s_lshl_b32 s{S_T1}, s{S_T1}, 7")
I(f"s_add_u32 s{S_GU}, s{S_GU}, s{S_T1}")
I(f"s_lshl_b32 s{S_X}, s{S_T0}, 1")
I("s_cmp_lt_u32 s2, 216")
I(f"s_cselect_b32 s{S_GU}, s{S_GU}, 0")
I(f"s_cselect_b32 s{S_X}, s{S_X}, 0")
I(f"s_cselect_b32 s{S_T3}, 0, {BIG}")
I(f"v_or_b32 v{V_GUO}, s{S_T3}, v{V_GUO}")
for b in range(4):
    I(f"buffer_load_ushort v{V_XF+b}, v{V_T1}, {sq(SRD_X)}, s{S_X} offen offset:{b*1280}")
    sc.note(("xf", b))
for i in range(5):
    issue(("gu", i))
state["reserve"] = 4
srd(SRD_V, 20, 0x8000000)
srd(SRD_WO, 24, 5242880)
srd(SRD_WS, 40, WS_BYTES)
srd(SRD_D, 32, 2211840)
I(f"s_lshl_b32 s{S_WO}, s{S_H}, 7")
I(f"s_lshl_b32 s{S_T3}, s{S_W}, 5")
I(f"s_add_u32 s{S_WO}, s{S_WO}, s{S_T3}")
I(f"s_mul_i32 s{S_WO}, s{S_WO}, 1280")
I(f"v_mul_u32_u24 v{V_WO}, 1280, v{V_SIG}")
I(f"v_lshl_add_u32 v{V_WO}, v{V_RHO}, 4, v{V_WO}")
I(f"v_lshrrev_b32 v{V_T2}, 1, v{V_CC}")
I(f"v_and_b32 v{V_T3}, 1, v{V_LANE}")
I(f"v_lshlrev_b32 v{V_T3}, 4, v{V_T3}")
I(f"v_mov_b32 v{V_T0}, 0xffff")
I(f"v_lshlrev_b32 v{V_T3}, v{V_T3}, v{V_T0}")
for i in range(4):
    I(f"v_cmp_eq_u32 vcc, {i}, v{V_T2}")
    I(f"v_cndmask_b32 v{V_MASK+i}, 0, v{V_T3}, vcc")
I(f"v_lshl_add_u32 v{V_LDSW}, v{V_SIG}, 5, v{V_CC}")
I(f"v_lshlrev_b32 v{V_LDSW}, 2, v{V_LDSW}")
I(f"s_mov_b32 s{S_SCALE}, {SCALE}")
unit2()
I(f"s_lshl_b32 s{S_T0}, s{S_T0}, 6")
I(f"s_lshl_b32 s{S_T3}, s{S_W}, 4")
I(f"s_add_u32 s{S_T0}, s{S_T0}, s{S_T3}")
I(f"s_mul_i32 s{S_D0}, s{S_T0}, 1280")
I(f"s_lshl_b32 s{S_T1}, s{S_T1}, 8")
I(f"s_add_u32 s{S_D0}, s{S_D0}, s{S_T1}")
I(f"v_or_b32 v{V_DO}, s{S_T2}, v{V_WO}")
I(f"s_lshl_b32 s{S_T2}, s{S_REC}, 2")
I(f"s_add_u32 s{S_T2}, s{S_T2}, s{S_W}")
I(f"s_mul_i32 s{S_YW}, s{S_T2}, 640")
I(f"s_add_u32 s{S_YW}, s{S_YW}, {Y_OFF}")
I(f"v_lshrrev_b32 v{V_T0}, 1, v{V_SIG}")
I(f"v_and_b32 v{V_T1}, 1, v{V_SIG}")
I(f"v_lshl_add_u32 v{V_T1}, v{V_T1}, 5, v{V_CC}")
I(f"v_lshlrev_b32 v{V_T1}, 2, v{V_T1}")
I(f"v_lshl_add_u32 v{V_T1}, v{V_T0}, 10, v{V_T1}")
I(f"s_lshl_b32 s{S_T3}, s{S_W}, 11")
I(f"v_add_u32 v{V_R1}, s{S_T3}, v{V_T1}")
I(f"v_cmp_eq_u32 s[{S_T4}:{S_T5}], v{V_T0}, v{V_UU}")
I("s_barrier")


def gemv_unit(kind, X, acc, lbase, cnt):
    for b in range(4):
        I(f"v_lshl_or_b32 v{X+b}, v{X+b}, 16, v{X+b}")
    n = 0
    for i in range(5):
        sc.wait([(kind, i)])
        for b in range(4):
            B = [V_B0, V_B1][n & 1]
            y = [V_T2, V_T0][n & 1]
            n += 1
            I(f"v_mov_b32_dpp v{y}, v{X+b} row_newbcast:{i} row_mask:0xf bank_mask:0x3")
            I(f"v_mov_b32_dpp v{y}, v{X+b} row_newbcast:{8+i} row_mask:0xf bank_mask:0xc")
            for k in range(4):
                I(f"v_and_b32 v{B+k}, v{y}, v{V_MASK+k}")
            cc = "0" if i == 0 else q4(acc[b])
            I(f"v_mfma_f32_16x16x32_bf16 {q4(acc[b])}, {q4(sc.slot[(kind, i)])}, {q4(B)}, {cc}")
        sc.release((kind, i))
        fill()
    I(f"v_mov_b32 v{V_T0}, 0")
    I(f"v_mov_b32 v{V_T2}, 1")
    I(f"s_mov_b64 exec, s[{S_T4}:{S_T5}]")
    for b in range(4):
        for r in range(4):
            I(f"ds_write_b32 v{V_R1}, v{acc[b]+r} offset:{lbase+b*256+r*32}")
    I("s_mov_b64 exec, 1")
    I(f"ds_add_u32 v{V_T0}, v{V_T2} offset:{L_FLAG+cnt}")
    I("s_mov_b64 exec, -1")


sc.wait([("x", 3)])
gemv_unit("wq", V_XQ, [V_SC + 4 * b for b in range(4)], L_QX, CNT_Q)
if P["ST2"] == 1:
    stamp(2)
advance(5 + P["PGU"])
state["reserve"] = 0
acc = [sc.tmp() for _ in range(4)]
sc.wait([("xf", 3)])
gemv_unit("gu", V_XF, acc, L_S1, CNT_F)
I("s_waitcnt lgkmcnt(0)")
sc.free += acc
if P["PG"]:
    lds_wait(NONW, 1, V_T0, V_T1)
    I(f"v_readfirstlane_b32 s{S_ORG}, v{V_T1}")
    I(f"s_mul_i32 s{S_NON}, s{S_ORG}, {NMUL}")
    for j in range(4):
        I(f"s_bfe_u32 s{S_STAG+j}, s{S_NON}, {(8 << 16) | (8 * j)}")
    if P["PHW"]:
        I(f"s_mul_i32 s{S_T3}, s{S_W}, {P['PHW']}")
        I(f"s_sub_u32 s{S_ORG}, s{S_ORG}, s{S_T3}")
    if P["PHG"]:
        I(f"s_lshr_b32 s{S_T3}, s2, 3")
        I(f"s_and_b32 s{S_T3}, s{S_T3}, 3")
        I(f"s_mul_i32 s{S_T3}, s{S_T3}, {P['PHG']}")
        I(f"s_sub_u32 s{S_ORG}, s{S_ORG}, s{S_T3}")
    gate_on[0] = True
advance(5 + P["PC"])
lds_wait(QRDY, 1, V_T0, V_T1)
I(f"v_lshlrev_b32 v{V_T1}, 4, v{V_RHO}")
I(f"ds_read_b128 {q4(V_Q)}, v{V_T1} offset:{L_Q}")
I(f"ds_read_b32 v{V_T2}, v{V_T0} offset:{L_FLAG+NONW}")
state["D"] = P["D"]
I(f"v_mov_b32 v{V_M}, 0xff7fffff")
I(f"v_mov_b32 v{V_L}, 0")
I("s_waitcnt lgkmcnt(0)")
if not P["PG"]:
    I(f"v_readfirstlane_b32 s{S_ORG}, v{V_T2}")
    I(f"s_mul_i32 s{S_NON}, s{S_ORG}, {NMUL}")
    for j in range(4):
        I(f"s_bfe_u32 s{S_STAG+j}, s{S_NON}, {(8 << 16) | (8 * j)}")
if not P["ST3"]:
    stamp(1)

BANK_OF_T = [0, 2, 1, 3]

def pace_clock(T):
    if P["PK"] and P["PT0"] - 1 <= T < P["PT1"]:
        I(f"s_memrealtime s[{S_PT}:{S_PT+1}]")


def pace(T):
    if P["PH"] and P["PT0"] <= T <= P["PT1"]:
        sk, lp = lab("pk"), lab("pl")
        e.lines.append(lp + ":")
        I(f"s_memrealtime s[{S_PT}:{S_PT+1}]")
        I("s_waitcnt lgkmcnt(0)")
        I(f"s_sub_u32 s{S_T4}, s{S_PT}, s{S_ORG}")
        I(f"s_cmp_lt_u32 s{S_T4}, {NOM[T]}")
        I(f"s_cbranch_scc0 {sk}")
        tb = e.t
        I("s_sleep 1")
        I(f"s_branch {lp}")
        e.skip_label(sk, tb)
        return
    if not P["PK"] or T < P["PT0"] or T > P["PT1"]:
        return
    n = sc.count - sc.done
    if n < P["PK"]:
        return
    sk = lab("pk")
    I(f"s_cmp_lt_u32 s{S_T4}, {NOM[T-1]}")
    I(f"s_cbranch_scc0 {sk}")
    tb = e.t
    I(f"s_waitcnt vmcnt({n-P['PK']})")
    if P["PK2"]:
        I(f"s_cmp_lt_u32 s{S_T4}, {NOM[T-1]-P['PD2']}")
        I(f"s_cbranch_scc0 {sk}")
        I(f"s_waitcnt vmcnt({max(0, n-P['PK2'])})")
    e.skip_label(sk, tb)


def pace_read(T):
    if P["PK"] and P["PT0"] <= T <= P["PT1"]:
        I("s_waitcnt lgkmcnt(0)")
        I(f"s_sub_u32 s{S_T4}, s{S_PT}, s{S_ORG}")
    pace_clock(T)


def post_score(T):
    I(f"v_cvt_pk_bf16_f32 v{V_R1}, v{V_SC+T}, v{V_SC+T}")
    I(f"v_and_b32 v{V_R1}, s{S_HI}, v{V_R1}")
    I(f"v_mul_f32 v{V_R1}, s{S_SCALE}, v{V_R1}")
    I(f"v_cvt_pk_bf16_f32 v{V_R1}, v{V_R1}, v{V_R1}")
    I(f"v_and_b32 v{V_SC+T}, s{S_HI}, v{V_R1}")
    I(f"v_max_f32 v{V_M}, v{V_M}, v{V_SC+T}")


def hook_d():
    for x in range(4):
        issue(("d", x))
    state["reserve"] = 8


def hook_h():
    state["reserve"] = 0
    Hh = [sc.tmp() for _ in range(4)]
    acc = [sc.tmp() for _ in range(4)]
    lds_wait(HRDY, 1, V_T0, V_T1)
    I(f"s_lshl_b32 s{S_T3}, s{S_W}, 8")
    I(f"v_lshl_add_u32 v{V_T0}, v{V_SIG}, 6, s{S_T3}")
    for b in range(4):
        I(f"ds_read_b128 {q4(Hh[b])}, v{V_T0} offset:{L_H+b*16}")
    sc.wait([("d", 3)])
    I(f"s_lshl_b32 s{S_T3}, s{S_W}, 11")
    I(f"v_add_u32 v{V_T1}, s{S_T3}, v{V_LDSW}")
    I("s_waitcnt lgkmcnt(0)")
    n = 0
    for x in range(4):
        for b in range(4):
            B = [V_B0, V_B1][n & 1]
            n += 1
            for k in range(4):
                I(f"v_and_b32 v{B+k}, v{Hh[b]+x}, v{V_MASK+k}")
            cc = "0" if x == 0 else q4(acc[b])
            I(f"v_mfma_f32_16x16x32_bf16 {q4(acc[b])}, {q4(sc.slot[('d', x)])}, {q4(B)}, {cc}")
        sc.release(("d", x))
    sc.free += Hh
    fill()
    for b in range(4):
        for r in range(4):
            I(f"ds_write_b32 v{V_T1}, v{acc[b]+r} offset:{L_ZP+b*512+r*32}")
    lds_signal(CNT_Z, V_T0, V_T2)
    I("s_waitcnt lgkmcnt(0)")
    sc.free += acc


def hook_mlp():
    I(f"v_mov_b32 v{V_T0}, 0")
    I(f"s_lshl_b32 s{S_T3}, s{S_W}, 2")
    I(f"v_mov_b32 v{V_T2}, s{S_T3}")
    I(f"ds_read_b32 v{V_T1}, v{V_T0} offset:{L_FLAG+FRDY}")
    I(f"ds_read_b32 v{V_F}, v{V_T2} offset:{L_F}")


def hook_mlu():
    ok = lab("fok")
    if P["SPLIT"]:
        I("s_waitcnt lgkmcnt(0)")
        I(f"v_cmp_ne_u32 vcc, 0, v{V_T1}")
        I(f"s_cbranch_vccnz {ok}")
    tb = e.t
    lds_wait(FRDY, 1, V_T0, V_T1)
    I(f"s_lshl_b32 s{S_T3}, s{S_W}, 2")
    I(f"v_mov_b32 v{V_T0}, s{S_T3}")
    I(f"ds_read_b32 v{V_F}, v{V_T0} offset:{L_F}")
    I("s_waitcnt lgkmcnt(0)")
    e.skip_label(ok, tb)


hooks = {}
for name, fn in (("T_D", hook_d), ("T_H", hook_h), ("T_MLU", hook_mlu)):
    hooks.setdefault(P[name], []).append(fn)
if P["SPLIT"]:
    hooks.setdefault(P["T_MLU"] - 1, []).append(hook_mlp)


def run_hooks(T):
    for fn in hooks.pop(T, []):
        fn()


for T in range(32):
    keys = [("k", 4 * T + t) for t in range(4)]
    sc.wait(keys)
    tl(T)
    pace_read(T)
    for j in range(4):
        for t in range(4):
            a = sc.slot[keys[t]] + j
            if j == 0:
                I(f"v_dot2_f32_bf16 v{V_C+t}, v{a}, v{V_Q}, 0")
            else:
                I(f"v_dot2c_f32_bf16 v{V_C+t}, v{a}, v{V_Q+j}")
    for k in keys:
        sc.release(k)
    if T < P["AD0"] or (P["ADV"] and (T - P["AD0"]) % P["ADV"] == P["ADV"] - 1):
        pend = [k for k in main[:mp] if sc.idx[k] >= sc.done]
        if pend and main.index(pend[0]) >= 5 + 4 * T + 8:
            sc.wait(pend[:4])
    pace(T)
    fill(1)
    I(f"v_add_f32_dpp v{V_Z01}, v{V_C}, v{V_C} row_ror:8 row_mask:0xf bank_mask:0x3")
    I(f"v_add_f32_dpp v{V_Z01}, v{V_C+1}, v{V_C+1} row_ror:8 row_mask:0xf bank_mask:0xc")
    I(f"v_add_f32_dpp v{V_Z23}, v{V_C+2}, v{V_C+2} row_ror:8 row_mask:0xf bank_mask:0x3")
    I(f"v_add_f32_dpp v{V_Z23}, v{V_C+3}, v{V_C+3} row_ror:8 row_mask:0xf bank_mask:0xc")
    fill(1)
    I(f"v_add_f32_dpp v{V_W}, v{V_Z01}, v{V_Z01} row_ror:12 row_mask:0xf bank_mask:0x5")
    I(f"v_add_f32_dpp v{V_W}, v{V_Z23}, v{V_Z23} row_ror:4 row_mask:0xf bank_mask:0xa")
    fill(2)
    if T > 0:
        post_score(T - 1)
    I(f"v_add_f32_dpp v{V_W}, v{V_W}, v{V_W} quad_perm:[2,3,0,1] row_mask:0xf bank_mask:0xf")
    fill()
    I(f"v_add_f32_dpp v{V_SC+T}, v{V_W}, v{V_W} quad_perm:[1,0,3,2] row_mask:0xf bank_mask:0xf")
    run_hooks(T)
post_score(31)
wave_allreduce("v_max_f32", V_M, V_T0)
I(f"v_mul_f32 v{V_NM}, s{S_LOG2E}, v{V_M}")
I(f"v_sub_f32 v{V_NM}, 0, v{V_NM}")
if not P["ST2"] and not P["TL"]:
    stamp(2)
I(f"v_mov_b32 v{V_C+2}, 0")
for T in range(0, 32, 2):
    for u in range(2):
        I(f"v_fma_f32 v{V_C+u}, v{V_SC+T+u}, s{S_LOG2E}, v{V_NM}")
    for u in range(2):
        I(f"v_exp_f32 v{V_C+u}, v{V_C+u}")
    for u in range(2):
        I(f"v_cvt_pk_bf16_f32 v{V_SC+T+u}, v{V_C+u}, v{V_C+u}")
    I(f"v_add_f32 v{V_L}, v{V_L}, v{V_C}")
    I(f"v_add_f32 v{V_C+2}, v{V_C+2}, v{V_C+1}")
    if P["XF"] and (T // 2) % P["XF"] == P["XF"] - 1:
        pend = [k for k in main[:mp] if sc.idx[k] >= sc.done]
        sc.wait(pend[:P["XN"]])
        fill()
I(f"v_add_f32 v{V_L}, v{V_L}, v{V_C+2}")
wave_allreduce("v_add_f32", V_L, V_T0)
I(f"s_lshl_b32 s{S_T3}, s{S_W}, 3")
I(f"v_mov_b32 v{V_T1}, s{S_T3}")
I(f"v_mov_b32 v{V_T0}, 0")
I(f"v_mov_b32 v{V_T2}, 1")
I("s_mov_b64 exec, 1")
I(f"ds_write_b64 v{V_T1}, {q2(V_M)} offset:{L_ML}")
I(f"ds_add_u32 v{V_T0}, v{V_T2} offset:{L_FLAG+CNT_ML}")
I("s_mov_b64 exec, -1")


def pv(T):
    keys = [("v", 4 * T + t) for t in range(4)]
    sc.wait(keys)
    tl(32 + T)
    pace_read(32 + T)
    Bs = [V_B0, V_B1]
    for t in range(2):
        bbuild(Bs[t], V_SC + T, 4 * BANK_OF_T[t])
    for t in range(4):
        c = "0" if (T == 0 and t == 0) else q4(V_ACC)
        I(f"v_mfma_f32_16x16x32_bf16 {q4(V_ACC)}, {q4(sc.slot[keys[t]])}, {q4(Bs[t&1])}, {c}")
        sc.release(keys[t])
        if t + 2 < 4:
            bbuild(Bs[t & 1], V_SC + T, 4 * BANK_OF_T[t + 2])
        else:
            if t == 2:
                pace(32 + T)
            fill(2)
    fill()


for T in range(32):
    if T >= P["WOSTART"]:
        state["side_due"] += P["WORATE"]
    pv(T)
    if T % 4 == 3:
        sc.free.append(V_SC + T - 3)
        fill()
    run_hooks(32 + T)
if P["ST3"]:
    stamp(1)
state["side_due"] = 99
fill()
assert not side and mp == len(main) and not hooks, (side, mp, hooks)
I(f"s_lshl_b32 s{S_T3}, s{S_W}, 9")
I(f"v_add_u32 v{V_T0}, s{S_T3}, v{V_LDSW}")
I(f"v_lshl_add_u32 v{V_T2}, v{V_CC}, 2, v{V_SIG}")
I(f"s_lshl_b32 s{S_T3}, s{S_W}, 5")
I(f"v_add_u32 v{V_T2}, s{S_T3}, v{V_T2}")
I(f"v_lshlrev_b32 v{V_T2}, 2, v{V_T2}")
for r in range(4):
    I(f"v_mul_f32 v{V_ACC+r}, v{V_F}, v{V_ACC+r}")
for r in range(4):
    I(f"ds_write_b32 v{V_T0}, v{V_ACC+r} offset:{L_OP+r*32}")
I("s_waitcnt lgkmcnt(0)")
I("s_barrier")
for w in range(4):
    I(f"ds_read_b32 v{V_C+w}, v{V_T2} offset:{L_OP+w*512}")
I(f"s_mul_i32 s{S_T3}, s{S_W}, 2560")
I(f"v_add_u32 v{V_T0}, s{S_T3}, v{V_LDSW}")
I(f"s_mul_i32 s{S_T3}, s{S_W}, 640")
I(f"v_add_u32 v{V_T1}, s{S_T3}, v{V_KV}")
I("s_waitcnt lgkmcnt(0)")
I(f"v_add_f32 v{V_C}, v{V_C}, v{V_C+1}")
I(f"v_add_f32 v{V_C+2}, v{V_C+2}, v{V_C+3}")
I(f"v_add_f32 v{V_C}, v{V_C}, v{V_C+2}")
I(f"v_cvt_pk_bf16_f32 v{V_NM}, v{V_C}, v{V_C}")
OACC = [V_Q, V_ACC, 28, 32, 36]
sc.wait([("wo", 7, 4)])
Bs = [V_B0, V_B1]
bbuild(Bs[0], V_NM, 0)
for i in range(8):
    if i + 1 < 8:
        bbuild(Bs[(i + 1) & 1], V_NM, i + 1)
    for c in range(5):
        a = OACC[c]
        cc = "0" if i == 0 else q4(a)
        I(f"v_mfma_f32_16x16x32_bf16 {q4(a)}, {q4(sc.slot[('wo', i, c)])}, {q4(Bs[i&1])}, {cc}")
for c in range(5):
    for r in range(4):
        I(f"ds_write_b32 v{V_T0}, v{OACC[c]+r} offset:{L_YP+c*512+r*32}")
I(f"v_cmp_gt_u32 vcc, 40, v{V_LANE}")
I(f"v_mov_b32 v{V_T3}, 0xffffff00")
I("s_waitcnt lgkmcnt(0)")
I("s_barrier")
I(f"s_and_saveexec_b64 s[{S_SAVE}:{S_SAVE+1}], vcc")
R = POOL0
for w in range(4):
    I(f"ds_read_b128 {q4(R+4*w)}, v{V_T1} offset:{L_YP+w*2560}")
I("s_waitcnt lgkmcnt(2)")
for j in range(4):
    I(f"v_add_f32 v{R+j}, v{R+j}, v{R+4+j}")
I("s_waitcnt lgkmcnt(0)")
for j in range(4):
    I(f"v_add_f32 v{R+8+j}, v{R+8+j}, v{R+12+j}")
for j in range(4):
    I(f"v_add_f32 v{R+j}, v{R+j}, v{R+8+j}")
tag_put([R + j for j in range(4)], V_T3, S_STAG)
I(f"buffer_store_dwordx4 {q4(R)}, v{V_KV}, {sq(SRD_WS)}, s{S_YW} offen sc1")
if P["STAMP"]:
    I("s_waitcnt vmcnt(0)")
    stamp(3)
    stamp_store()
I("s_endpgm")

e.label("L_comm")
A, Bq, G = 48, 80, 96
V_G, V_ZT = 20, 24
V_NONP = 30
V_AQ, V_AF, V_AZ, V_AY, V_AC = 32, 33, 34, 35, 36
if P["PRIO"]:
    I(f"s_setprio {P['PRIO']}")
for j in range(4):
    I(f"v_mov_b32 v{A+j}, 0")
    I(f"v_mov_b32 v{A+4+j}, -1")
I(f"v_mov_b32 v{V_T0}, 0")
I(f"ds_write_b128 v{V_T0}, {q4(A)} offset:{L_FLAG}")
I(f"ds_write_b128 v{V_T0}, {q4(A)} offset:{L_FLAG+16}")
I(f"v_mov_b32 v{V_NONP+1}, 0")
I(f"s_and_b32 s{S_T4}, s2, 7")
I(f"s_lshl_b32 s{S_T4}, s{S_T4}, 5")
I("s_waitcnt lgkmcnt(0)")
srd(SRD_DBG, 38, 256)
I(f"s_or_b32 s{S_NON}, s{S_NON}, 1")
I(f"v_mov_b32 v{V_NONP}, s{S_NON}")
I("s_mov_b64 exec, 1")
I(f"buffer_atomic_cmpswap {q2(V_NONP)}, v{V_T0}, {sq(SRD_DBG)}, s{S_T4} offen sc0 sc1")
I("s_mov_b64 exec, -1")
srd(SRD_WS, 40, WS_BYTES)
srd(SRD_X, 16, 5120)
srd(SRD_GW, 34, 1280)
srd(SRD_OUT, 36, 5120)
I("s_barrier")
unit2()
I(f"s_mov_b32 s{S_N2}, s{S_T2}")
I(f"s_mov_b32 s{S_RB}, s{S_T0}")
I(f"s_lshl_b32 s{S_FPR}, s{S_T0}, 8")
I(f"s_add_u32 s{S_FPR}, s{S_FPR}, {FP_OFF}")
I(f"s_mul_i32 s{S_ZW}, s{S_T1}, 27")
I(f"s_add_u32 s{S_ZW}, s{S_ZW}, s{S_T0}")
I(f"s_lshl_b32 s{S_ZW}, s{S_ZW}, 11")
I(f"s_add_u32 s{S_ZW}, s{S_ZW}, {Z_OFF}")
I(f"s_and_b32 s{S_T0}, s{S_REC}, 63")
I(f"s_cmp_lt_u32 s{S_T0}, 40")
I(f"s_cselect_b32 s{S_NC}, 0, {BIG}")
I(f"s_cselect_b32 s{S_T0}, s{S_T0}, 0")
I(f"s_mul_i32 s{S_X}, s{S_B}, 1280")
I(f"v_mul_u32_u24 v{V_T0}, 20, v{V_LANE}")
I(f"v_or_b32 v{V_T0}, s{S_NC}, v{V_T0}")
I(f"buffer_load_dwordx4 {q4(G)}, v{V_T0}, {sq(SRD_X)}, s{S_X} offen")
I(f"buffer_load_dword v{G+8}, v{V_T0}, {sq(SRD_X)}, s{S_X} offen offset:16")
I(f"buffer_load_dwordx4 {q4(G+4)}, v{V_T0}, {sq(SRD_GW)}, 0 offen")
I(f"buffer_load_dword v{G+9}, v{V_T0}, {sq(SRD_GW)}, 0 offen offset:16")
I(f"s_lshl_b32 s{S_T3}, s{S_T0}, 5")
I(f"s_add_u32 s{S_OUTO}, s{S_X}, s{S_T3}")
I(f"s_mul_i32 s{S_YR}, s{S_B}, {64*2560}")
I(f"s_lshl_b32 s{S_T3}, s{S_T0}, 6")
I(f"s_add_u32 s{S_YR}, s{S_YR}, s{S_T3}")
I(f"s_add_u32 s{S_YR}, s{S_YR}, {Y_OFF}")
I(f"s_lshr_b32 s{S_T1}, s{S_T0}, 3")
I(f"s_mul_i32 s{S_ZR}, s{S_T1}, {27*2048}")
I(f"s_add_u32 s{S_CB}, s{S_T1}, {U2}")
I(f"s_and_b32 s{S_T1}, s{S_T0}, 7")
I(f"s_lshl_b32 s{S_T1}, s{S_T1}, 6")
I(f"s_add_u32 s{S_ZR}, s{S_ZR}, s{S_T1}")
I(f"s_lshl_b32 s{S_T1}, s{S_B}, 9")
I(f"s_add_u32 s{S_ZR}, s{S_ZR}, s{S_T1}")
I(f"s_add_u32 s{S_ZR}, s{S_ZR}, {Z_OFF}")
I(f"s_lshl_b32 s{S_QPR}, s{S_H}, 13")
I(f"s_add_u32 s{S_QPR}, s{S_QPR}, {QP_OFF}")
I(f"s_lshl_b32 s{S_T1}, s{S_B}, 1")
I(f"s_add_u32 s{S_T1}, s{S_T1}, s{S_S}")
I(f"s_lshl_b32 s{S_T1}, s{S_T1}, 8")
I(f"s_add_u32 s{S_QPW}, s{S_QPR}, s{S_T1}")
I(f"s_lshl_b32 s{S_T1}, s{S_B}, 11")
I(f"s_add_u32 s{S_QPR}, s{S_QPR}, s{S_T1}")
I(f"v_lshlrev_b32 v{V_AQ}, 11, v{V_SIG}")
I(f"v_lshl_add_u32 v{V_AQ}, v{V_RHO}, 4, v{V_AQ}")
unit1()
I(f"s_mul_i32 s{S_FPW}, s{S_T0}, {4*FPROW}")
I(f"s_lshl_b32 s{S_T1}, s{S_T1}, 8")
I(f"s_add_u32 s{S_FPW}, s{S_FPW}, s{S_T1}")
I(f"s_add_u32 s{S_FPW}, s{S_FPW}, {FP_OFF}")
I("s_cmp_lt_u32 s2, 216")
I(f"s_cselect_b32 s{S_FPW}, s{S_FPW}, {FP_OFF}")
I(f"s_cselect_b32 s{S_T3}, 0, {BIG}")
I(f"v_mul_u32_u24 v{V_AF}, {FPROW}, v{V_SIG}")
I(f"v_lshl_add_u32 v{V_AF}, v{V_RHO}, 4, v{V_AF}")
I(f"v_or_b32 v{V_AC}, s{S_T3}, v{V_AF}")
I(f"s_lshl_b32 s{S_MLW}, s{S_REC}, 4")
I(f"s_add_u32 s{S_MLW}, s{S_MLW}, {ML_OFF}")
I(f"s_lshr_b32 s{S_T3}, s{S_N2}, 30")
I(f"v_mov_b32 v{V_T0}, 0")
I(f"v_mov_b32 v{V_T1}, s{S_T3}")
I(f"ds_write_b32 v{V_T0}, v{V_T1} offset:{L_FLAG+HRDY}")
I(f"s_mov_b32 s{S_P0}, 0x0c0c0400")
I(f"s_mov_b32 s{S_P1}, 0x04000c0c")
I(f"s_mov_b32 s{S_M8}, 0xffffff00")
I("s_waitcnt vmcnt(4)")
I(f"v_readfirstlane_b32 s{S_T0}, v{V_NONP}")
I(f"s_cmp_eq_u32 s{S_T0}, 0")
I(f"s_cselect_b32 s{S_NON}, s{S_NON}, s{S_T0}")
I(f"v_mov_b32 v{V_T1}, s{S_NON}")
I(f"ds_write_b32 v{V_T0}, v{V_T1} offset:{L_FLAG+NONW}")
I(f"s_mul_i32 s{S_NON}, s{S_NON}, {NMUL}")
for j in range(4):
    I(f"s_bfe_u32 s{S_TAG+j}, s{S_NON}, {(8 << 16) | (8 * j)}")
I(f"v_mov_b32 v{V_T3}, 0xffffff00")


def lds_sum8(base, dst):
    for k in range(8):
        I(f"ds_read_b128 {q4(A+4*k)}, v{V_KV} offset:{base+k*1024}")
    for st, wt in ((0, 6), (8, 4), (16, 2), (24, 0)):
        I(f"s_waitcnt lgkmcnt({wt})")
        for j in range(4):
            I(f"v_add_f32 v{A+st+j}, v{A+st+j}, v{A+st+4+j}")
    for j in range(4):
        I(f"v_add_f32 v{A+j}, v{A+j}, v{A+8+j}")
        I(f"v_add_f32 v{A+16+j}, v{A+16+j}, v{A+24+j}")
    for j in range(4):
        I(f"v_add_f32 v{dst+j}, v{A+j}, v{A+16+j}")


ct("nonce")
lds_wait(CNT_Q, 4, V_T0, V_T1)
ct("cntq")
lds_sum8(L_QX, Bq)
tag_put([Bq + j for j in range(4)], V_T3, S_TAG)
I(f"buffer_store_dwordx4 {q4(Bq)}, v{V_AQ}, {sq(SRD_WS)}, s{S_QPW} offen sc1")


def fp_store():
    lds_wait(CNT_F, 4, V_T0, V_T1)
    ct("cntf")
    lds_sum8(L_S1, Bq + 4)
    tag_put([Bq + 4 + j for j in range(4)], V_T3, S_TAG)
    I(f"buffer_store_dwordx4 {q4(Bq+4)}, v{V_AC}, {sq(SRD_WS)}, s{S_FPW} offen sc1")


PB = 128
NB = P["QPIPE"]


def qp_issue(b):
    for i in range(2):
        I(f"buffer_load_dwordx4 {q4(PB+8*b+4*i)}, v{V_KV}, {sq(SRD_WS)}, s{S_QPR} offen offset:{1024*i} sc1")


I(f"s_mov_b32 s{S_SPIN}, 0")
for b in range(NB):
    qp_issue(b)
    if b + 1 < NB and P["QSP"]:
        I(f"s_sleep {P['QSP']}")
e.label("L_qloop")
I(f"s_add_u32 s{S_SPIN}, s{S_SPIN}, 1")
for b in range(NB):
    I(f"s_waitcnt vmcnt({2*NB-2})")
    for i in range(2):
        q = PB + 8 * b + 4 * i
        I(f"v_perm_b32 v{A+2*i}, v{q+1}, v{q}, s{S_P0}")
        I(f"v_perm_b32 v{A+2*i+1}, v{q+3}, v{q+2}, s{S_P1}")
    for i in range(2):
        I(f"v_or_b32 v{A+2*i}, v{A+2*i}, v{A+2*i+1}")
        I(f"v_xor_b32 v{A+2*i}, s{S_NON}, v{A+2*i}")
    I(f"v_or_b32 v{A}, v{A}, v{A+2}")
    I(f"v_cmp_ne_u32 vcc, 0, v{A}")
    I(f"s_cbranch_vccz L_qd{b}")
    I(f"s_cmp_gt_u32 s{S_SPIN}, {SPINMAX}")
    I(f"s_cbranch_scc1 L_qd{b}")
    qp_issue(b)
I("s_branch L_qloop")
for b in range(NB):
    e.label(f"L_qd{b}")
    for j in range(8):
        I(f"v_and_b32 v{A+j}, s{S_M8}, v{PB+8*b+j}")
    if b + 1 < NB:
        I("s_branch L_qdone")
e.label("L_qdone")
ct("qp")
for j in range(4):
    I(f"v_add_f32 v{A+j}, v{A+j}, v{A+4+j}")
for j in range(4):
    I(f"v_mov_b32 v{A+4+j}, v{A+j}")
for j in range(4):
    I(f"v_permlane32_swap_b32 v{A+j}, v{A+4+j}")
for j in range(4):
    I(f"v_add_f32 v{A+j}, v{A+j}, v{A+4+j}")
I(f"v_cvt_pk_bf16_f32 v{A+8}, v{A}, v{A+1}")
I(f"v_cvt_pk_bf16_f32 v{A+9}, v{A+2}, v{A+3}")
I(f"v_lshlrev_b32 v{V_T1}, 3, v{V_LANE}")
I(f"v_mov_b32 v{V_T0}, 0")
I(f"v_mov_b32 v{V_T2}, 1")
I("s_mov_b64 exec, 0xffffffff")
I(f"ds_write_b64 v{V_T1}, {q2(A+8)} offset:{L_Q}")
I("s_mov_b64 exec, 1")
I(f"ds_write_b32 v{V_T0}, v{V_T2} offset:{L_FLAG+QRDY}")
I("s_mov_b64 exec, -1")
V_NT = 37
I(f"v_and_b32 v{V_T1}, 7, v{V_LANE}")
I(f"v_lshlrev_b32 v{V_AY}, 5, v{V_T1}")
I(f"buffer_load_dword v{V_NT}, v{V_AY}, {sq(SRD_DBG)}, 0 offen sc1")
fp_store()
t = [A + j for j in range(4)]
I(f"v_mov_b32 v{V_G}, 0")
for j in range(5):
    gx = G + j if j < 4 else G + 8
    gw = G + 4 + j if j < 4 else G + 9
    I(f"v_lshlrev_b32 v{t[0]}, 16, v{gx}")
    I(f"v_and_b32 v{t[1]}, s{S_HI}, v{gx}")
    I(f"v_lshlrev_b32 v{t[2]}, 16, v{gw}")
    I(f"v_and_b32 v{t[3]}, s{S_HI}, v{gw}")
    I(f"v_mul_f32 v{t[0]}, v{t[0]}, v{t[2]}")
    I(f"v_mul_f32 v{t[1]}, v{t[1]}, v{t[3]}")
    I(f"v_cvt_pk_bf16_f32 v{t[0]}, v{t[0]}, v{t[1]}")
    I(f"v_lshlrev_b32 v{t[1]}, 16, v{t[0]}")
    I(f"v_and_b32 v{t[0]}, s{S_HI}, v{t[0]}")
    I(f"v_add_f32 v{V_G}, v{V_G}, v{t[1]}")
    I(f"v_add_f32 v{V_G}, v{V_G}, v{t[0]}")
I(f"v_add_f32_dpp v{V_G}, v{V_G}, v{V_G} quad_perm:[1,0,3,2] row_mask:0xf bank_mask:0xf")
I(f"v_add_f32_dpp v{V_G}, v{V_G}, v{V_G} quad_perm:[2,3,0,1] row_mask:0xf bank_mask:0xf")
wave_allreduce("v_add_f32", V_G, t[0])
rnd(V_G)
I(f"v_mul_f32 v{V_G}, s{S_LOG2E}, v{V_G}")
I(f"v_exp_f32 v{V_G}, -v{V_G}")
I(f"v_add_f32 v{V_G}, 1.0, v{V_G}")
I(f"v_rcp_f32 v{V_G}, v{V_G}")
rnd(V_G)
I(f"v_sub_f32 v{V_G+1}, 1.0, v{V_G}")
rnd(V_G + 1)
ntok = lab("nt")
I("s_waitcnt vmcnt(1)")
I(f"v_cmp_eq_u32 vcc, 0, v{V_NT}")
I(f"s_cbranch_vccz {ntok}")
mem_spin(lambda: I(f"buffer_load_dword v{V_NT}, v{V_AY}, {sq(SRD_DBG)}, 0 offen sc1"),
         lambda: I(f"v_cmp_eq_u32 vcc, 0, v{V_NT}"), 16)
e.label(ntok)
I(f"s_mov_b32 s{S_T3}, {NMUL}")
I(f"v_mul_lo_u32 v{V_NT}, v{V_NT}, s{S_T3}")
ct("ntab")
no2 = lab("no2")
I(f"s_cmp_lg_u32 s{S_N2}, 0")
I(f"s_cbranch_scc1 {no2}")
d = P["FDLY"]
while d > 0:
    I(f"s_sleep {min(d, 127)}")
    d -= 127


def fp_issue(k):
    I(f"s_add_u32 s{S_T3}, s{S_FPR}, {k*4*FPROW}")
    I(f"buffer_load_dwordx4 {q4(A+4*k)}, v{V_AF}, {sq(SRD_WS)}, s{S_T3} offen sc1")


for k in range(8):
    I(f"s_add_u32 s{S_T3}, s{S_RB}, {27*k}")
    I(f"s_and_b32 s{S_T3}, s{S_T3}, 7")
    I(f"v_readlane_b32 s{S_XN+k}, v{V_NT}, s{S_T3}")
tag_poll([A + 4 * k for k in range(8)], fp_issue, [-1] * 8, Bq, P["FSLP"], [f"s{S_XN+k}" for k in range(8)])
ct("fp")
I(f"v_lshrrev_b32 v{V_T0}, 2, v{V_RHO}")
I(f"v_and_b32 v{V_T1}, 3, v{V_RHO}")
I(f"v_lshlrev_b32 v{V_T0}, 8, v{V_T0}")
I(f"v_lshl_add_u32 v{V_T0}, v{V_SIG}, 4, v{V_T0}")
I(f"v_lshl_add_u32 v{V_T0}, v{V_T1}, 2, v{V_T0}")
for m in range(2):
    for j in range(4):
        I(f"v_add_f32 v{A+4*m+j}, v{A+4*m+j}, v{A+8+4*m+j}")
        I(f"v_add_f32 v{A+16+4*m+j}, v{A+16+4*m+j}, v{A+24+4*m+j}")
for j in range(8):
    I(f"v_add_f32 v{A+j}, v{A+j}, v{A+16+j}")
for j in range(4):
    I(f"v_cvt_pk_bf16_f32 v{A+8+j}, v{A+j}, v{A+4+j}")
for j in range(4):
    I(f"v_lshlrev_b32 v{A+12+j}, 16, v{A+8+j}")
    I(f"v_and_b32 v{A+8+j}, s{S_HI}, v{A+8+j}")
for j in range(4):
    I(f"v_mul_f32 v{A+8+j}, v{A+8+j}, v{A+12+j}")
for j in range(4):
    I(f"v_cvt_pk_bf16_f32 v{A+8+j}, v{A+8+j}, v{A+8+j}")
for j in range(4):
    I(f"ds_write_b32 v{V_T0}, v{A+8+j} offset:{L_H+j*64}")
I(f"v_mov_b32 v{V_T0}, 0")
I(f"v_mov_b32 v{V_T2}, 1")
I(f"ds_write_b32 v{V_T0}, v{V_T2} offset:{L_FLAG+HRDY}")
ct("hrdy")
lds_wait(CNT_Z, 4, V_T0, V_T1)
ct("cntz")
for k in range(8):
    I(f"ds_read_b128 {q4(A+4*k)}, v{V_KV} offset:{L_ZP+k*1024}")
I("s_waitcnt lgkmcnt(0)")
for m in range(2):
    for j in range(4):
        I(f"v_add_f32 v{A+4*m+j}, v{A+4*m+j}, v{A+8+4*m+j}")
        I(f"v_add_f32 v{A+16+4*m+j}, v{A+16+4*m+j}, v{A+24+4*m+j}")
for j in range(8):
    I(f"v_add_f32 v{A+j}, v{A+j}, v{A+16+j}")
tag_put([A + j for j in range(8)], V_T3, S_TAG)
I(f"buffer_store_dwordx4 {q4(A)}, v{V_KV}, {sq(SRD_WS)}, s{S_ZW} offen sc1")
I(f"buffer_store_dwordx4 {q4(A+4)}, v{V_KV}, {sq(SRD_WS)}, s{S_ZW} offen offset:1024 sc1")
e.label(no2)
lds_wait(CNT_ML, 4, V_T0, V_T1)
ct("cntml")
I(f"v_and_b32 v{V_T2}, 3, v{V_LANE}")
I(f"v_lshlrev_b32 v{V_T1}, 3, v{V_T2}")
I(f"ds_read_b64 {q2(Bq)}, v{V_T1} offset:{L_ML}")
I("s_waitcnt lgkmcnt(0)")
MW, LW, MG = Bq, Bq + 1, Bq + 4
I(f"v_max_f32_dpp v{MG}, v{MW}, v{MW} quad_perm:[1,0,3,2] row_mask:0xf bank_mask:0xf")
I(f"v_max_f32_dpp v{MG}, v{MG}, v{MG} quad_perm:[2,3,0,1] row_mask:0xf bank_mask:0xf")
I(f"v_sub_f32 v{V_T0}, v{MW}, v{MG}")
I(f"v_mul_f32 v{V_T0}, s{S_LOG2E}, v{V_T0}")
I(f"v_exp_f32 v{V_T0}, v{V_T0}")
I(f"v_mul_f32 v{MG+2}, v{V_T0}, v{LW}")
I(f"v_add_f32_dpp v{MG+2}, v{MG+2}, v{MG+2} quad_perm:[1,0,3,2] row_mask:0xf bank_mask:0xf")
I(f"v_add_f32_dpp v{MG+2}, v{MG+2}, v{MG+2} quad_perm:[2,3,0,1] row_mask:0xf bank_mask:0xf")
I(f"v_mov_b32 v{MG+1}, s{S_NON}")
I(f"v_mov_b32 v{MG+3}, s{S_NON}")
I("s_mov_b64 exec, 1")
I(f"buffer_store_dwordx4 {q4(MG)}, off, {sq(SRD_WS)}, s{S_MLW} sc1")
I("s_mov_b64 exec, -1")
I(f"s_xor_b32 s{S_MLW}, s{S_MLW}, 16")


def ml_check():
    I(f"v_xor_b32 v{V_T0}, s{S_NON}, v{A+1}")
    I(f"v_xor_b32 v{V_T1}, s{S_NON}, v{A+3}")
    I(f"v_or_b32 v{V_T0}, v{V_T0}, v{V_T1}")
    I(f"v_cmp_ne_u32 vcc, 0, v{V_T0}")


mem_spin(lambda: I(f"buffer_load_dwordx4 {q4(A)}, off, {sq(SRD_WS)}, s{S_MLW} sc1"), ml_check, 8)
I(f"v_max_f32 v{A+4}, v{MG}, v{A}")
I(f"v_sub_f32 v{A+5}, v{MG}, v{A+4}")
I(f"v_sub_f32 v{A+6}, v{A}, v{A+4}")
I(f"v_sub_f32 v{A+7}, v{MW}, v{A+4}")
for j in (5, 6, 7):
    I(f"v_mul_f32 v{A+j}, s{S_LOG2E}, v{A+j}")
for j in (5, 6, 7):
    I(f"v_exp_f32 v{A+j}, v{A+j}")
I(f"v_mul_f32 v{A+5}, v{A+5}, v{MG+2}")
I(f"v_fma_f32 v{A+5}, v{A+6}, v{A+2}, v{A+5}")
I(f"v_rcp_f32 v{A+5}, v{A+5}")
I(f"v_lshlrev_b32 v{V_T1}, 2, v{V_T2}")
I(f"v_mul_f32 v{A+7}, v{A+7}, v{A+5}")
I(f"v_mov_b32 v{V_T0}, 0")
I(f"v_mov_b32 v{V_T2}, 1")
I("s_mov_b64 exec, 15")
I(f"ds_write_b32 v{V_T1}, v{A+7} offset:{L_F}")
I(f"ds_write_b32 v{V_T0}, v{V_T2} offset:{L_FLAG+FRDY}")
I("s_mov_b64 exec, -1")
ct("frdy")
ct_store()
I(f"s_cmp_lg_u32 s{S_NC}, 0")
I("s_cbranch_scc1 L_end")
I(f"v_lshrrev_b32 v{V_T2}, 2, v{V_LANE}")
I(f"v_and_b32 v{V_T3}, 3, v{V_LANE}")
I(f"v_lshlrev_b32 v{V_AZ}, 11, v{V_T2}")
I(f"v_lshl_add_u32 v{V_AZ}, v{V_T3}, 4, v{V_AZ}")
I(f"v_add_u32 v{V_AC}, {16*2048}, v{V_AZ}")
for j in range(4):
    I(f"v_mov_b32 v{A+4+j}, 0")
I(f"v_mul_u32_u24 v{V_AY}, 2560, v{V_T2}")
I(f"v_lshl_add_u32 v{V_AY}, v{V_T3}, 4, v{V_AY}")


V_XZ, V_XY = 112, 116
I(f"v_mul_u32_u24 v{V_T0}, 5, v{V_T2}")
I(f"v_add_u32 v{V_T0}, s{S_CB}, v{V_T0}")
I(f"v_and_b32 v{V_T0}, 7, v{V_T0}")
I(f"v_lshlrev_b32 v{V_T0}, 2, v{V_T0}")
I(f"ds_bpermute_b32 v{V_XZ}, v{V_T0}, v{V_NT}")
I(f"v_lshrrev_b32 v{V_T1}, 5, v{V_LANE}")
I(f"v_lshlrev_b32 v{V_T1}, 2, v{V_T1}")
for i in range(4):
    I(f"ds_bpermute_b32 v{V_XY+i}, v{V_T1}, v{V_NT} offset:{8*i}")
I("s_waitcnt lgkmcnt(0)")
I(f"s_mov_b32 s{S_T2}, -1")
I(f"s_mov_b32 s{S_T3}, 0xfff")
tag_poll([A, A + 4], lambda i: I(f"buffer_load_dwordx4 {q4(A+4*i)}, v{(V_AZ, V_AC)[i]}, {sq(SRD_WS)}, s{S_ZR} offen sc1"),
         [-1, f"s[{S_T2}:{S_T3}]"], A + 8, 16, [f"v{V_XZ}"] * 2)
for j in range(4):
    I(f"v_add_f32 v{V_ZT+j}, v{A+j}, v{A+4+j}")
multi_reduce([V_ZT + j for j in range(4)], [A + j for j in range(4)])
for j in range(4):
    rnd(V_ZT + j)
for j in range(4):
    I(f"v_mul_f32 v{V_ZT+j}, v{V_G+1}, v{V_ZT+j}")
for j in range(4):
    rnd(V_ZT + j)
SOY = [S_K, S_V, S_WQ, S_WO]
for i in range(4):
    I(f"s_add_u32 s{SOY[i]}, s{S_YR}, {i*16*2560}")
I(f"v_lshlrev_b32 v{V_AQ}, 3, v{V_LANE}")
I("s_barrier")
I("s_barrier")
YR = A
tag_poll([YR + 4 * i for i in range(4)],
         lambda i: I(f"buffer_load_dwordx4 {q4(YR+4*i)}, v{V_AY}, {sq(SRD_WS)}, s{SOY[i]} offen sc1"),
         [-1] * 4, Bq, P["SLEEP"], [f"v{V_XY+i}" for i in range(4)])
AY = Bq
for j in range(4):
    I(f"v_add_f32 v{YR+j}, v{YR+j}, v{YR+4+j}")
    I(f"v_add_f32 v{YR+8+j}, v{YR+8+j}, v{YR+12+j}")
for j in range(4):
    I(f"v_add_f32 v{AY+j}, v{YR+j}, v{YR+8+j}")
multi_reduce([AY + j for j in range(4)], [AY + 4 + j for j in range(4)])
for j in range(4):
    rnd(AY + j)
for j in range(4):
    I(f"v_mul_f32 v{AY+j}, v{V_G}, v{AY+j}")
for j in range(4):
    rnd(AY + j)
for j in range(4):
    I(f"v_add_f32 v{AY+j}, v{AY+j}, v{V_ZT+j}")
I(f"v_cvt_pk_bf16_f32 v{AY+4}, v{AY}, v{AY+1}")
I(f"v_cvt_pk_bf16_f32 v{AY+5}, v{AY+2}, v{AY+3}")
I("s_mov_b64 exec, 15")
I(f"buffer_store_dwordx2 {q2(AY+4)}, v{V_AQ}, {sq(SRD_OUT)}, s{S_OUTO} offen")
if P["STAMP"]:
    I("s_waitcnt vmcnt(0)")
    stamp(3)
    I("s_waitcnt lgkmcnt(0)")
    I(f"s_mul_i32 s{S_T2}, s2, 128")
    I(f"v_mov_b32 v100, s{S_ST+6}")
    I(f"v_mov_b32 v101, s{S_ST+7}")
    I("v_mov_b32 v108, 0")
    I("s_mov_b64 exec, 1")
    I(f"buffer_store_dwordx2 v[100:101], v108, {sq(SRD_WS)}, s{S_T2} offen offset:8 sc1")
e.raw("L_end:")
I("s_endpgm")

e.raw('.section .rodata,"a"')
e.raw(".p2align 6")
e.raw(f".amdhsa_kernel {KA}")
e.raw("  .amdhsa_next_free_vgpr 256")
e.raw("  .amdhsa_next_free_sgpr 102")
e.raw("  .amdhsa_accum_offset 256")
e.raw("  .amdhsa_group_segment_fixed_size 0")
e.raw("  .amdhsa_kernarg_size 104")
e.raw("  .amdhsa_user_sgpr_count 2")
e.raw("  .amdhsa_user_sgpr_kernarg_segment_ptr 1")
e.raw("  .amdhsa_system_sgpr_workgroup_id_x 1")
e.raw("  .amdhsa_float_denorm_mode_32 3")
e.raw(".end_amdhsa_kernel")
sys.stdout.write(e.text())
sys.stderr.write(f"nops: {e.nops}  ct: {' '.join(ct_names)}\n")
```
